```python
import torch

def _softmax(x, axis=-1):
    return torch.softmax(x, dim=axis)
def _gelu(x):
    return torch.nn.functional.gelu(x, approximate="tanh")
def _silu(x):
    return torch.nn.functional.silu(x)
def _sigmoid(x):
    return torch.sigmoid(x)
def _layernorm(x, axis=-1, eps=1e-5):
    m = x.mean(dim=axis, keepdim=True)
    v = x.var(dim=axis, keepdim=True, unbiased=False)
    return (x - m) / torch.sqrt(v + eps)
def _scatter_add(tgt, idx, src, axis=0):
    return tgt.clone().index_add_(axis, idx, src)
def _segment_sum(src, seg, n):
    out = torch.zeros((n,) + src.shape[1:], dtype=src.dtype)
    return out.index_add_(0, seg, src)
def _pad(x, pw):
    flat = tuple(v for pair in reversed(pw) for v in pair)
    return torch.nn.functional.pad(x, flat)

kernel_name = 'interleave_layers__mha_block__dense_activation_silu__prompt'

def setup_inputs():

    _w = (lambda a: (lambda t: t.to(torch.bfloat16) if t.is_floating_point() else t)(torch.as_tensor(a)))
    def _A_setup():
        B, S, D, H = 1, 2048, 576, 32
        return {
            "x": _w((lambda *s: torch.randn(*s, dtype=torch.bfloat16) * 0.05)(B, S, D)),
            "wqkv": _w((lambda *s: torch.randn(*s, dtype=torch.bfloat16) * 0.05)(D, 3 * D)),
            "wo": _w((lambda *s: torch.randn(*s, dtype=torch.bfloat16) * 0.05)(D, D)),
        }
    _A_in = _A_setup()

    def _B_setup():
        B, S, D, F = 1, 2048, 576, 4608
        return {
            "x": _w((lambda *s: torch.randn(*s, dtype=torch.bfloat16) * 0.05)(B, S, D)),
            "w1": _w((lambda *s: torch.randn(*s, dtype=torch.bfloat16) * 3.2)(D, F) * (D ** -0.5)),
            "w2": _w((lambda *s: torch.randn(*s, dtype=torch.bfloat16) * 0.4)(F, D) * (F ** -0.5)),
        }
    _B_in = _B_setup()

    return {
        "A_x": _A_in["x"],
        "A_wqkv": _A_in["wqkv"],
        "A_wo": _A_in["wo"],
        "B_x": _B_in["x"],
        "B_w1": _B_in["w1"],
        "B_w2": _B_in["w2"],
    }

def reference(A_x, A_wqkv, A_wo, B_x, B_w1, B_w2):
    def _A_ref(x, wqkv, wo):
        B, S, D = x.shape
        H = 32
        Dh = D // H
        qkv = (lambda x, *d: x.permute(*d))((x @ wqkv).reshape(B, S, 3, H, Dh), 2, 0, 3, 1, 4)
        q, k, v = qkv[0], qkv[1], qkv[2]
        scores = torch.einsum("bhqd,bhkd->bhqk", q, k) * (Dh ** -0.5)
        p = _softmax(scores, axis=-1)
        o = torch.einsum("bhqk,bhkd->bhqd", p, v)
        return (lambda x, *d: x.permute(*d))(o, 0, 2, 1, 3).reshape(B, S, D) @ wo

    def _B_ref(x, w1, w2):
        h = torch.einsum("bsd,df->bsf", x, w1)
        h = _silu(h)
        out = torch.einsum("bsf,fd->bsd", h, w2)
        return out

    x = A_x
    x = x + _A_ref(_layernorm(x, axis=-1), A_wqkv, A_wo)
    x = x + _B_ref(_layernorm(x, axis=-1), B_w1, B_w2)
    x = x + _A_ref(_layernorm(x, axis=-1), A_wqkv, A_wo)
    x = x + _B_ref(_layernorm(x, axis=-1), B_w1, B_w2)
    return x
```

```python
import re

def R(kind, lo, n=1):
    return f"{kind}{lo}" if n == 1 else f"{kind}[{lo}:{lo+n-1}]"
def v(lo, n=1): return R("v", lo, n)
def a(lo, n=1): return R("a", lo, n)
def s(lo, n=1): return R("s", lo, n)

_reg_re = re.compile(r"^(-|abs\(|\|)?([vas])(\d+|\[(\d+):(\d+)\])\)?\|?$")
def regs_of(tok):
    tok = tok.strip()
    if tok in ("vcc", "exec", "m0", "scc"): return [(tok, 0)]
    if tok in ("vcc_lo", "vcc_hi"): return [("vcc", 0)]
    if tok in ("exec_lo", "exec_hi"): return [("exec", 0)]
    m = _reg_re.match(tok)
    if not m: return []
    k = m.group(2)
    if m.group(4) is not None:
        return [(k, i) for i in range(int(m.group(4)), int(m.group(5)) + 1)]
    return [(k, int(m.group(3)))]

TRANS = ("v_exp_", "v_log_", "v_rcp_", "v_rsq_", "v_sqrt_", "v_sin_", "v_cos_")

class Ins:
    __slots__ = ("op", "args", "mods", "kind", "rd", "wr", "tag", "waits", "nops", "wait_vm", "wait_lgkm", "comment", "needtags", "passes")
    def __init__(self, op, args, mods="", tag=None, comment=None):
        self.op = op; self.args = list(args); self.mods = mods; self.tag = tag; self.comment = comment
        self.nops = 0; self.wait_vm = None; self.wait_lgkm = None; self.needtags = None; self.passes = 0
        self.classify()
    def text(self):
        t = self.op
        if self.args: t += " " + ", ".join(str(x) for x in self.args)
        if self.mods: t += " " + self.mods
        if self.comment: t += "  ; " + self.comment
        return t
    def classify(self):
        op = self.op; A = [str(x) for x in self.args]
        rd = []; wr = []
        r = lambda i: regs_of(A[i]) if i < len(A) else []
        allr = lambda st: [x for i in range(st, len(A)) for x in regs_of(A[i])]
        lds = " lds" in (" " + self.mods)
        if op.startswith("v_mfma"):
            self.kind = "mfma"; wr = r(0); rd = allr(1)
            self.passes = 8 if "32x32" in op else 4
        elif op.startswith("buffer_load") or op.startswith("global_load"):
            if lds or "load_lds" in op:
                self.kind = "dma"; rd = allr(0) + [("m0", 0)]
            else:
                self.kind = "vmem_ld"; wr = r(0); rd = allr(1)
                if "d16" in op: rd += r(0)
        elif op.startswith("buffer_store") or op.startswith("global_store"):
            self.kind = "vmem_st"; rd = allr(0)
        elif op.startswith("buffer_atomic") or op.startswith("global_atomic"):
            self.kind = "vmem_at"; rd = allr(0)
            if "sc0" in self.mods: wr = r(0)
        elif op in ("buffer_wbl2", "buffer_inv"):
            self.kind = "vmem_st"
        elif op.startswith("ds_read") or op.startswith("ds_bpermute") or op.startswith("ds_swizzle") or op.startswith("ds_permute"):
            self.kind = "ds_ld"; wr = r(0); rd = allr(1)
            if "d16" in op: rd += r(0)
        elif op.startswith("ds_write") or op.startswith("ds_add") or op.startswith("ds_max"):
            self.kind = "ds_st"; rd = allr(0)
        elif op.startswith("s_load") or op.startswith("s_memtime") or op.startswith("s_memrealtime"):
            self.kind = "smem"; wr = r(0); rd = allr(1)
        elif op in ("s_waitcnt", "s_barrier", "s_nop", "s_setprio", "s_sleep", "s_endpgm"):
            self.kind = "misc"
        elif op.startswith("s_cbranch") or op == "s_branch":
            self.kind = "branch"
            if "scc" in op: rd = [("scc", 0)]
            if "vcc" in op: rd = [("vcc", 0)]
            if "exec" in op: rd = [("exec", 0)]
        elif op.startswith("s_cmp") or op.startswith("s_bitcmp"):
            self.kind = "salu"; rd = allr(0); wr = [("scc", 0)]
        elif op.startswith("s_"):
            self.kind = "salu"; wr = r(0); rd = allr(1)
            if "saveexec" in op: wr += [("exec", 0)]; rd += [("exec", 0)]
            if op.startswith(("s_add", "s_sub", "s_and", "s_or", "s_xor", "s_lshl", "s_lshr", "s_ashr", "s_min", "s_max", "s_not", "s_andn2", "s_bfe", "s_mul_i", "s_abs")) and not op.startswith("s_mul"):
                wr += [("scc", 0)]
            if op.startswith(("s_addc", "s_subb", "s_cselect", "s_cmov")): rd += [("scc", 0)]
            if op in ("s_addk_i32", "s_mulk_i32"): rd += r(0)
        elif op.startswith("v_"):
            self.kind = "valu"
            if op.startswith("v_cmp"):
                wr = r(0); rd = allr(1)
                if op.startswith("v_cmpx"): wr += [("exec", 0)]
            elif op.startswith("v_readfirstlane") or op.startswith("v_readlane"):
                wr = r(0); rd = allr(1)
            elif op.startswith("v_permlane") and "swap" in op:
                wr = r(0) + r(1); rd = r(0) + r(1)
            elif op.startswith(("v_add_co", "v_sub_co", "v_addc_co", "v_subb_co", "v_subrev_co")):
                wr = r(0) + r(1); rd = allr(2)
            elif op.startswith("v_cndmask"):
                wr = r(0); rd = allr(1)
                if len(A) == 3: rd += [("vcc", 0)]
            else:
                wr = r(0); rd = allr(1)
                if op.startswith(("v_fmac", "v_dot2c", "v_pk_fmac", "v_writelane")) : rd += r(0)
                if "_dpp" in op or "_sdwa" in op or "row_" in self.mods or "quad_perm" in self.mods: rd += r(0)
            rd += [("exec", 0)]
        else:
            raise ValueError("unknown op " + op)
        self.rd = rd; self.wr = wr
    def is_trans(self): return self.op.startswith(TRANS)
    def is_dpp(self): return "_dpp" in self.op
    def is_vmem(self): return self.kind in ("dma", "vmem_ld", "vmem_st", "vmem_at")

class Label:
    def __init__(self, name): self.name = name
class Raw:
    def __init__(self, text): self.text = text
class Loop:
    def __init__(self, label, body, count): self.label = label; self.body = body; self.count = count
class Alt:
    def __init__(self, bodies): self.bodies = bodies

class K:
    uid = 0
    def __init__(self, name):
        self.name = name
        self.items = []
        self.stack = [self.items]
    @property
    def cur(self): return self.stack[-1]
    def I(self, op, *args, mods="", tag=None, c=None):
        ins = Ins(op, args, mods, tag, c)
        self.cur.append(ins); return ins
    def emit(self, ins): self.cur.append(ins); return ins
    def label(self, name): self.cur.append(Label(name))
    def raw(self, t): self.cur.append(Raw(t))
    def newlabel(self, base="L"):
        K.uid += 1
        return f"{base}_{self.name[:8]}_{K.uid}"
    def wait_tags(self, *tags, lgkm=False):
        ins = Ins("s_waitcnt", []); ins.needtags = set(tags); self.cur.append(ins); return ins
    def wait_all(self, vm=True, lgkm=True):
        t = []
        if vm: t.append("vmcnt(0)")
        if lgkm: t.append("lgkmcnt(0)")
        return self.I("s_waitcnt", " ".join(t))
    def nop(self, n=1):
        while n > 0:
            k = min(n, 16); self.I("s_nop", k - 1); n -= k
    def loop(self, count, ctr, body_fn, init=True):
        lab = self.newlabel("LP")
        if init: self.I("s_mov_b32", s(ctr), count)
        body = []
        self.stack.append(body)
        body_fn()
        self.I("s_sub_u32", s(ctr), s(ctr), 1)
        self.I("s_cmp_lg_u32", s(ctr), 0)
        self.I("s_cbranch_scc1", lab)
        self.stack.pop()
        self.cur.append(Loop(lab, body, count))
    def if_scc(self, skip_op, body_fn):
        lab = self.newlabel("SK")
        self.I(skip_op, lab)
        body = []
        self.stack.append(body); body_fn(); self.stack.pop()
        self.cur.append(Alt([body, []])); self.label(lab)
    def if_else(self, else_op, fa, fb):
        le = self.newlabel("EL"); ld = self.newlabel("EN")
        self.I(else_op, le)
        A = []; self.stack.append(A); fa(); self.I("s_branch", ld); self.stack.pop()
        B = [Label(le)]; self.stack.append(B); fb(); self.stack.pop()
        self.cur.append(Alt([A, B])); self.label(ld)
    def switch(self, sreg, cases):
        ld = self.newlabel("SWE")
        labs = [self.newlabel("SW") for _ in cases]
        for (b, _), l in zip(cases[:-1], labs[:-1]):
            self.I("s_cmp_lt_u32", s(sreg), b); self.I("s_cbranch_scc1", l)
        self.I("s_branch", labs[-1])
        bodies = []
        for i, ((b, fn), l) in enumerate(zip(cases, labs)):
            B = [Label(l)]; self.stack.append(B); fn()
            if i < len(cases) - 1: self.I("s_branch", ld)
            self.stack.pop(); bodies.append(B)
        self.cur.append(Alt(bodies)); self.label(ld)

    def _alts(self, items, acc):
        for it in items:
            if isinstance(it, Loop): self._alts(it.body, acc)
            elif isinstance(it, Alt):
                acc.append(it)
                for b in it.bodies: self._alts(b, acc)
        return acc
    def _trace(self, items, choice, maxit):
        out = []
        for it in items:
            if isinstance(it, Ins): out.append(it)
            elif isinstance(it, Loop):
                n = it.count if it.count <= maxit else maxit
                for _ in range(n): out += self._trace(it.body, choice, maxit)
            elif isinstance(it, Alt):
                out += self._trace(it.bodies[choice[id(it)]], choice, maxit)
        return out

    def resolve(self, maxit=None):
        import itertools
        if maxit is None: maxit = getattr(self, "maxit", 4)
        alts = self._alts(self.items, [])
        tot = 1
        for al in alts: tot *= len(al.bodies)
        if tot <= 256:
            combos = itertools.product(*[range(len(al.bodies)) for al in alts])
        else:
            m = max(len(al.bodies) for al in alts)
            combos = [tuple(min(i, len(al.bodies) - 1) for al in alts) for i in range(m)]
        traces = []
        seen = set()
        for cmb in combos:
            choice = {id(al): c for al, c in zip(alts, cmb)}
            tr = self._trace(self.items, choice, maxit)
            key = tuple(id(x) for x in tr)
            if key in seen: continue
            seen.add(key); traces.append(tr)
        for tr in traces: self._waits(tr)
        for tr in traces: self._hazards(tr)

    def _waits(self, tr):
        vm = []
        lg = []
        smem = False
        def upd(ins, attr, n):
            cur = getattr(ins, attr)
            setattr(ins, attr, n if cur is None else min(cur, n))
        for ins in tr:
            if ins.op == "s_waitcnt" and ins.needtags is None:
                t = ins.args[0]
                m = re.search(r"vmcnt\((\d+)\)", t)
                if m:
                    n = int(m.group(1)); vm = vm[len(vm) - n:] if n < len(vm) and n > 0 else ([] if n == 0 else vm)
                m = re.search(r"lgkmcnt\((\d+)\)", t)
                if m:
                    n = int(m.group(1))
                    if n == 0: lg = []; smem = False
                    elif n < len(lg): lg = lg[len(lg) - n:]
                continue
            if ins.needtags is not None:
                idx = -1
                for i, (o, _) in enumerate(vm):
                    if o.tag in ins.needtags: idx = i
                n = len(vm) - 1 - idx if idx >= 0 else None
                if n is not None:
                    n = min(n, 63); upd(ins, "wait_vm", n); vm = vm[len(vm) - n:] if n > 0 else []
                continue
            touched = set(ins.rd) | set(ins.wr)
            idx = -1
            for i, (o, regs) in enumerate(vm):
                if regs and (regs & touched): idx = i
            if idx >= 0:
                n = min(len(vm) - 1 - idx, 63); upd(ins, "wait_vm", n); vm = vm[len(vm) - n:] if n > 0 else []
            idx = -1
            has_smem = any(o.kind == "smem" for o, _ in lg)
            for i, (o, regs) in enumerate(lg):
                if regs and (regs & touched): idx = i
            if idx >= 0:
                n = 0 if has_smem else min(len(lg) - 1 - idx, 15)
                upd(ins, "wait_lgkm", n); lg = lg[len(lg) - n:] if n > 0 else []
            if ins.op == "s_barrier":
                if any(o.kind == "ds_st" for o, _ in lg) :
                    upd(ins, "wait_lgkm", 0); lg = []
            if ins.is_vmem(): vm.append((ins, set(ins.wr)))
            elif ins.kind in ("ds_ld", "ds_st", "smem"): lg.append((ins, set(ins.wr)))
            if len(vm) > 63: vm = vm[-63:]
            if len(lg) > 15 and not any(o.kind == "smem" for o, _ in lg): lg = lg[-15:]

    def _hazards(self, tr):
        hist = []
        def states(x):
            n = x.nops
            if x.op == "s_nop": n += int(x.args[0]) + 1
            elif x.needtags is not None and x.wait_vm is None: n += 0
            else: n += 1
            return n
        for pos, ins in enumerate(tr):
            need = 0
            rd = set(ins.rd); wr = set(ins.wr)
            rdv = {x for x in rd if x[0] in "va"}; wrv = {x for x in wr if x[0] in "va"}
            rds = {x for x in rd if x[0] == "s" or x[0] in ("vcc",)}
            dist = 0
            for j in range(pos - 1, max(-1, pos - 24), -1):
                p = tr[j]
                pw = set(p.wr); pr = set(p.rd)
                req = 0
                if p.kind == "valu":
                    pwv = {x for x in pw if x[0] in "va"}
                    pws = {x for x in pw if x[0] == "s" or x[0] == "vcc"}
                    if ins.kind == "mfma" and (pwv & rdv): req = max(req, 2)
                    if ins.kind == "valu":
                        if p.is_trans() and (pwv & (rdv | wrv)) : req = max(req, 1)
                        if ins.is_dpp() and (pwv & rdv): req = max(req, 2)
                        if ins.op.startswith("v_permlane") and (pwv & rdv): req = max(req, 2)
                        if ins.op.startswith(("v_readlane", "v_readfirstlane")) and (pwv & rdv): req = max(req, 1)
                        if pws & rds: req = max(req, 2)
                        if ("_sdwa" in p.op or "op_sel" in p.mods) and (pwv & (rdv | wrv)): req = max(req, 1)
                        if ("exec", 0) in pw and ins.is_dpp(): req = max(req, 5)
                        if ("exec", 0) in pw and ins.op.startswith(("v_readlane", "v_readfirstlane", "v_permlane")): req = max(req, 4)
                    if ins.kind == "mfma" and ("exec", 0) in pw: req = max(req, 4)
                    if ins.is_vmem() and (pws & rds): req = max(req, 5)
                    if ins.kind == "salu" and (pws & rds): req = max(req, 4)
                    if ins.kind == "branch" and (pws & rds): req = max(req, 5)
                if p.kind == "mfma":
                    P = p.passes
                    d = {x for x in pw}
                    if ins.kind == "mfma":
                        cA = set(regs_of(str(ins.args[1]))) | set(regs_of(str(ins.args[2])))
                        cC = set(regs_of(str(ins.args[3])))
                        if d & cA: req = max(req, {2: 5, 4: 8, 8: 12, 16: 20}[P])
                        if d & cC:
                            if not (cC == d and ins.passes == P): req = max(req, {2: 4, 4: 6, 8: 10, 16: 18}[P])
                        if (d & wrv) and not (d & cC): req = max(req, {2: 5, 4: 8, 8: 12, 16: 20}[P])
                    else:
                        if d & (rdv | wrv): req = max(req, {2: 5, 4: 8, 8: 12, 16: 20}[P])
                        pc = set(regs_of(str(p.args[3])))
                        if ins.kind == "valu" and (pc & wrv): req = max(req, {2: 1, 4: 3, 8: 7, 16: 15}[P])
                if p.kind in ("vmem_st", "vmem_at") and ("x4" in p.op or "x3" in p.op):
                    data = set(regs_of(str(p.args[0]))) if p.op.startswith("buffer") else set(regs_of(str(p.args[1])))
                    if (data & wrv): req = max(req, 2 if ins.kind == "valu" else 1)
                if p.kind == "salu" and ("m0", 0) in pw and ins.kind == "dma": req = max(req, 1)
                if req > dist: need = max(need, req - dist)
                dist += states(p)
                if dist >= 22: break
            if need > ins.nops: ins.nops = need

    def render(self, items=None, ind="  "):
        out = []
        for it in (self.items if items is None else items):
            if isinstance(it, Ins):
                w = []
                if it.wait_vm is not None: w.append(f"vmcnt({it.wait_vm})")
                if it.wait_lgkm is not None: w.append(f"lgkmcnt({it.wait_lgkm})")
                if w: out.append(ind + "s_waitcnt " + " ".join(w))
                n = it.nops
                while n > 0:
                    k = min(n, 16); out.append(ind + f"s_nop {k-1}"); n -= k
                if it.needtags is None: out.append(ind + it.text())
            elif isinstance(it, Label): out.append(it.name + ":")
            elif isinstance(it, Raw): out.append(it.text)
            elif isinstance(it, Loop):
                out.append(it.label + ":"); out += self.render(it.body, ind)
            elif isinstance(it, Alt):
                for b in it.bodies: out += self.render(b, ind)
        return out

def kernel_text(k, nvgpr, nagpr=0, nsgpr=96):
    k.resolve()
    t = [f".globl {k.name}", ".p2align 8", f".type {k.name},@function", f"{k.name}:"]
    t += k.render()
    return "\n".join(t) + "\n"

def descriptor(name, nvgpr, nagpr=0, nsgpr=96, wg_y=False):
    acc = (nvgpr + 3) // 4 * 4
    tot = acc + nagpr if nagpr else nvgpr
    return f""".amdhsa_kernel {name}
  .amdhsa_next_free_vgpr {tot}
  .amdhsa_next_free_sgpr {nsgpr}
  .amdhsa_accum_offset {acc}
  .amdhsa_group_segment_fixed_size 0
  .amdhsa_kernarg_size 72
  .amdhsa_user_sgpr_count 2
  .amdhsa_user_sgpr_kernarg_segment_ptr 1
  .amdhsa_system_sgpr_workgroup_id_x 1
  .amdhsa_float_denorm_mode_32 3
.end_amdhsa_kernel
"""
```

```python
from asm import *

S = 2048; D = 576; H = 32; DH = 18; F = 4608
RT = 64
KS = 36
def _al(x, a=4096): return (x + a - 1) // a * a
off = {}
_cur = 0
def _alloc(name, n):
    global _cur
    off[name] = _cur
    _cur = _al(_cur + n)
XF_BYTES = RT * KS * 1024
_alloc("XF", XF_BYTES)
_alloc("XN", XF_BYTES)
_alloc("WQKV", 56 * KS * 1024)
_alloc("WO", 18 * KS * 1024)
_alloc("W1", 144 * KS * 1024)
_alloc("W2", 18 * 288 * 1024)
_alloc("QM", H * RT * 1024)
_alloc("QE", H * S * 4)
KV_CHUNK = 19456
KV_HEAD = 8 * KV_CHUNK
_alloc("KV", H * KV_HEAD + 65536)
_alloc("OM", RT * H * 1024)
_alloc("OE", H * S * 4)
_alloc("ST", RT * 9 * 64 * 8)
_alloc("HF", RT * 288 * 1024)
_alloc("PART", 5 * XF_BYTES)
WS_USED = _cur
WS_SIZE = 268435456
LOG2E = 1.4426950408889634
import struct
def f2u(x): return struct.unpack("<I", struct.pack("<f", x))[0]
def hexf(x): return hex(f2u(x))

SRD_WS = 8
SRD_A = 12
def load_ptr(k, dst, slot): k.I("s_load_dwordx2", s(dst, 2), s(0, 2), slot * 8)
def make_srd(k, srd, ptr, nbytes):
    k.I("s_mov_b32", s(srd), s(ptr))
    k.I("s_and_b32", s(srd + 1), s(ptr + 1), 0xffff)
    k.I("s_mov_b32", s(srd + 2), hex(nbytes))
    k.I("s_mov_b32", s(srd + 3), "0x20000")
def exit_if_ge(k, sreg, n):
    k.I("s_cmp_ge_u32", s(sreg), n)
    k.I("s_cbranch_scc1", k.endlabel)
def begin(name):
    k = K(name)
    k.endlabel = k.newlabel("END")
    return k
def finish(k):
    k.label(k.endlabel)
    k.I("s_endpgm")
    return k
```

```python
from common import *
from k_gemm1 import mfma, wave_setup, offm

def make_attn(name):
    k = begin(name)
    exit_if_ge(k, 2, 256)
    load_ptr(k, 4, 8)
    vL, vL16, vK, vKe, vV, vT, vH, vN = 1, 2, 3, 4, 5, 6, 7, 8
    QM_, QE_ = 12, 16
    SS = 20
    OO = 52
    PP = 68
    KM = 76
    KE = 84
    VV = 92
    TM = 108
    wave_setup(k, vL, 20)
    k.I("v_lshlrev_b32", v(vL16), 4, v(vL))
    k.I("v_lshrrev_b32", v(vH), 5, v(vL))
    k.I("v_and_b32", v(vN), 31, v(vL))
    k.I("s_and_b32", s(21), s(2), 7)
    k.I("s_lshr_b32", s(22), s(2), 3)
    k.I("s_lshl_b32", s(23), s(21), 2)
    k.I("s_and_b32", s(24), s(22), 3)
    k.I("s_add_u32", s(23), s(23), s(24))
    k.I("s_lshr_b32", s(24), s(22), 2)
    k.I("s_lshl_b32", s(25), s(24), 3)
    k.I("s_add_u32", s(25), s(25), s(20))
    k.wait_all(vm=False)
    make_srd(k, SRD_WS, 4, WS_SIZE)
    k.I("s_lshl_b32", s(26), s(23), 6)
    k.I("s_add_u32", s(26), s(26), s(25))
    k.I("s_lshl_b32", s(26), s(26), 10)
    k.I("s_add_u32", s(26), s(26), off["QM"])
    k.I("buffer_load_dwordx4", v(QM_, 4), v(vL16), s(SRD_WS, 4), s(26), mods="offen")
    k.I("s_lshl_b32", s(27), s(23), 13)
    k.I("s_lshl_b32", s(28), s(25), 7)
    k.I("s_add_u32", s(27), s(27), s(28))
    k.I("s_add_u32", s(27), s(27), off["QE"])
    k.I("v_lshlrev_b32", v(vT), 2, v(vN))
    k.I("buffer_load_dword", v(QE_), v(vT), s(SRD_WS, 4), s(27), mods="offen")
    k.I("s_mul_i32", s(30), s(23), KV_HEAD)
    k.I("s_add_u32", s(30), s(30), off["KV"])
    k.I("s_lshl_b32", s(31), s(20), 10)
    k.I("s_add_u32", s(30), s(30), s(31))
    for i in range(19):
        k.I("s_mov_b32", "m0", s(31))
        k.I("buffer_load_dwordx4", v(vL16), s(SRD_WS, 4), s(30), mods="offen lds", tag="KV")
        k.I("s_add_u32", s(30), s(30), 8192)
        k.I("s_add_u32", s(31), s(31), 8192)
    k.I("v_mov_b32", v(vK), v(vL16))
    k.I("v_lshlrev_b32", v(vKe), 2, v(vN))
    k.I("v_add_u32", v(vKe), 8192, v(vKe))
    k.I("v_subrev_u32", v(vT), 16, v(vN))
    k.I("v_cmp_gt_u32", "vcc", 20, v(vN))
    k.I("v_cndmask_b32", v(vT), v(vT), v(vN), "vcc")
    k.I("v_lshlrev_b32", v(vT), 4, v(vT))
    k.I("v_mul_u32_u24", v(vV), 320, v(vH))
    k.I("v_add3_u32", v(vV), v(vV), v(vT), "9216") if False else None
    k.I("v_add_u32", v(vV), v(vV), v(vT))
    k.I("v_add_u32", v(vV), 9216, v(vV))
    for i in range(1, 4):
        k.I("v_mov_b32", v(QE_ + i), 0)
        k.I("v_mov_b32", v(KE + i), 0)
        k.I("v_mov_b32", v(KE + 4 + i), 0)
    for i in range(16): k.I("v_mov_b32", v(OO + i), 0)
    k.I("v_cmp_gt_u32", "vcc", 32, v(vL))
    k.I("v_cndmask_b32", v(QE_), 0, v(QE_), "vcc")
    def ldK(t):
        b = t & 1
        c, tt = divmod(t, 8)
        k.I("ds_read_b128", v(KM + 4 * b, 4), v(vK), mods=f"offset:{c * KV_CHUNK + tt * 1024}")
        k.I("ds_read_b32", v(KE + 4 * b), v(vKe), mods=f"offset:{c * KV_CHUNK + tt * 128}")
    def ldV(t):
        b = t & 1
        c, tt = divmod(t, 8)
        for u in range(2):
            k.I("ds_read_b128", v(VV + 8 * b + 4 * u, 4), v(vV), mods=f"offset:{c * KV_CHUNK + (2 * tt + u) * 640}")
    def qk(t, which):
        b = t & 1
        if which == 0: mfma(k, SS + 16 * b, v(KM + 4 * b, 4), v(QM_, 4), True)
        else: mfma(k, SS + 16 * b, v(KE + 4 * b, 4), v(QE_, 4))
    k.I("s_waitcnt", "vmcnt(16)")
    k.I("s_barrier")
    ldK(0); ldV(0); ldK(1)
    qk(0, 0); qk(0, 1)
    def tile(t):
        b = t & 1
        Sb = SS + 16 * b
        if t == 6:
            def w0(): k.I("s_waitcnt", "vmcnt(14)")
            def w1(): k.I("s_waitcnt", "vmcnt(0)")
            k.I("s_cmp_eq_u32", s(41), 8)
            k.if_else("s_cbranch_scc0", w0, w1)
            k.I("s_barrier")
        qk(t + 1, 0)
        for i in range(8): k.I("v_exp_f32", v(Sb + i), v(Sb + i))
        qk(t + 1, 1)
        ldK(t + 2)
        for i in range(4): k.I("v_cvt_pk_bf16_f32", v(PP + i), v(Sb + 2 * i), v(Sb + 2 * i + 1))
        for i in range(8, 16): k.I("v_exp_f32", v(Sb + i), v(Sb + i))
        mfma(k, OO, v(VV + 8 * b, 4), v(PP, 4))
        ldV(t + 1)
        for i in range(4, 8): k.I("v_cvt_pk_bf16_f32", v(PP + i), v(Sb + 2 * i), v(Sb + 2 * i + 1))
        mfma(k, OO, v(VV + 8 * b + 4, 4), v(PP + 4, 4))
    def body():
        for t in range(8): tile(t)
        k.I("v_add_u32", v(vK), KV_CHUNK, v(vK))
        k.I("v_add_u32", v(vKe), KV_CHUNK, v(vKe))
        k.I("v_add_u32", v(vV), KV_CHUNK, v(vV))
    k.maxit = 3
    k.loop(8, 41, body)
    vLs, vInv = TM, TM + 1
    def finish_rows():
        k.I("v_mov_b32", v(vLs), v(OO + 10))
        k.I("v_mov_b32", v(vInv), v(OO + 10))
        k.I("v_permlane32_swap_b32", v(vLs), v(vInv))
    finish_rows()
    k.I("v_cmp_le_f32", "vcc", hexf(2.0 ** -40), v(vLs))
    k.I("v_cmp_ge_f32", s(44, 2), hexf(2.0 ** 60) if False else v(vLs), v(vLs)) if False else None
    k.I("s_mov_b32", s(46), hexf(2.0 ** 60))
    k.I("v_cmp_le_f32", s(44, 2), v(vLs), s(46))
    k.I("s_and_b64", "vcc", "vcc", s(44, 2))
    k.I("v_max3_f32", v(TM + 2), "abs(" + v(OO) + ")", "abs(" + v(OO + 1) + ")", "abs(" + v(OO + 2) + ")")
    k.I("v_max3_f32", v(TM + 2), "abs(" + v(OO + 3) + ")", "abs(" + v(OO + 4) + ")", v(TM + 2))
    k.I("v_max3_f32", v(TM + 2), "abs(" + v(OO + 5) + ")", "abs(" + v(OO + 6) + ")", v(TM + 2))
    k.I("v_max3_f32", v(TM + 2), "abs(" + v(OO + 7) + ")", v(TM + 2), v(TM + 2))
    k.I("v_max3_f32", v(TM + 2), "abs(" + v(OO + 8) + ")", "abs(" + v(OO + 9) + ")", v(TM + 2))
    k.I("s_mov_b32", s(46), hexf(2.0 ** 120))
    k.I("v_cmp_le_f32", s(44, 2), v(TM + 2), s(46))
    k.I("s_and_b64", "vcc", "vcc", s(44, 2))
    k.I("s_cmp_eq_u64", "vcc", -1)
    def slow():
        vM, vMn, vAl = TM + 3, TM + 4, TM + 5
        k.I("v_mov_b32", v(vM), "0xff800000")
        for i in range(16): k.I("v_mov_b32", v(OO + i), 0)
        k.I("v_subrev_u32", v(vK), 8 * KV_CHUNK, v(vK))
        k.I("v_subrev_u32", v(vKe), 8 * KV_CHUNK, v(vKe))
        k.I("v_subrev_u32", v(vV), 8 * KV_CHUNK, v(vV))
        def sbody():
            for t in range(8):
                ldK(2 * (t // 2) * 0 + t) if False else None
                k.I("ds_read_b128", v(KM, 4), v(vK), mods=f"offset:{t * 1024}")
                k.I("ds_read_b32", v(KE), v(vKe), mods=f"offset:{t * 128}")
                for u in range(2):
                    k.I("ds_read_b128", v(VV + 4 * u, 4), v(vV), mods=f"offset:{(2 * t + u) * 640}")
                mfma(k, SS, v(KM, 4), v(QM_, 4), True)
                mfma(k, SS, v(KE, 4), v(QE_, 4))
                k.I("v_max3_f32", v(vMn), v(SS), v(SS + 1), v(vM))
                for i in range(2, 16, 2): k.I("v_max3_f32", v(vMn), v(SS + i), v(SS + i + 1), v(vMn))
                k.I("v_mov_b32", v(vAl), v(vMn))
                k.I("v_permlane32_swap_b32", v(vAl), v(vMn))
                k.I("v_max_f32", v(vMn), v(vMn), v(vAl))
                k.I("v_sub_f32", v(vAl), v(vM), v(vMn))
                k.I("v_exp_f32", v(vAl), v(vAl))
                k.I("v_mov_b32", v(vM), v(vMn))
                for i in range(16):
                    k.I("v_sub_f32", v(SS + i), v(SS + i), v(vMn))
                    k.I("v_exp_f32", v(SS + i), v(SS + i))
                    k.I("v_mul_f32", v(OO + i), v(OO + i), v(vAl))
                for i in range(8): k.I("v_cvt_pk_bf16_f32", v(PP + i), v(SS + 2 * i), v(SS + 2 * i + 1))
                mfma(k, OO, v(VV, 4), v(PP, 4))
                mfma(k, OO, v(VV + 4, 4), v(PP + 4, 4))
            k.I("v_add_u32", v(vK), KV_CHUNK, v(vK))
            k.I("v_add_u32", v(vKe), KV_CHUNK, v(vKe))
            k.I("v_add_u32", v(vV), KV_CHUNK, v(vV))
        k.loop(8, 41, sbody)
        finish_rows()
    k.if_scc("s_cbranch_scc1", slow)
    k.I("v_rcp_f32", v(vInv), v(vLs))
    for i in range(10): k.I("v_mul_f32", v(OO + i), v(OO + i), v(vInv))
    for i in range(5): k.I("v_cvt_pk_bf16_f32", v(PP + i), v(OO + 2 * i), v(OO + 2 * i + 1))
    k.I("s_lshl_b32", s(26), s(25), 5)
    k.I("s_add_u32", s(26), s(26), s(23))
    k.I("s_lshl_b32", s(26), s(26), 10)
    k.I("s_add_u32", s(26), s(26), off["OM"])
    k.I("buffer_store_dwordx4", v(PP, 4), v(vL16), s(SRD_WS, 4), s(26), mods="offen")
    k.I("s_lshl_b32", s(27), s(23), 13)
    k.I("s_lshl_b32", s(28), s(25), 7)
    k.I("s_add_u32", s(27), s(27), s(28))
    k.I("s_add_u32", s(27), s(27), off["OE"])
    k.I("v_lshlrev_b32", v(vT), 2, v(vN))
    k.I("s_mov_b64", "exec", "0xffffffff")
    k.I("buffer_store_dword", v(PP + 4), v(vT), s(SRD_WS, 4), s(27), mods="offen")
    return finish(k), dict(nv=120, na=0)
```

```python
from common import *
from k_gemm1 import mfma, wave_setup, offm, dma

def interleave(k, main, fill, start=0, end=None):
    n = len(main)
    if end is None: end = n
    slots = end - start
    pos = 0
    for g in range(n):
        for f in main[g]: f()
        if start <= g < end:
            tgt = (len(fill) * (g - start + 1) + slots - 1) // slots
            while pos < min(tgt, len(fill)):
                fill[pos](); pos += 1
    while pos < len(fill):
        fill[pos](); pos += 1

def make_ffn1(name):
    k = begin(name)
    exit_if_ge(k, 2, 256)
    load_ptr(k, 4, 8)
    vL, vL16, vA, vR, vM, vT = 1, 2, 3, 4, 6, 8
    XB, ACC, FR, TM, P = 16, 160, 192, 208, 224
    PF = 3; NFR = 4
    TILE = 36 * 1024
    wave_setup(k, vL, 20)
    k.I("v_lshlrev_b32", v(vL16), 4, v(vL))
    k.I("s_and_b32", s(21), s(2), 7)
    k.I("s_lshr_b32", s(22), s(2), 3)
    k.I("s_and_b32", s(23), s(21), 1)
    k.I("s_lshl_b32", s(23), s(23), 3)
    k.I("s_and_b32", s(24), s(22), 7)
    k.I("s_add_u32", s(23), s(23), s(24))
    k.I("s_lshr_b32", s(24), s(21), 1)
    k.I("s_lshl_b32", s(24), s(24), 2)
    k.I("s_lshr_b32", s(25), s(22), 3)
    k.I("s_add_u32", s(24), s(24), s(25))
    k.I("s_lshl_b32", s(25), s(23), 2)
    k.I("s_add_u32", s(25), s(25), s(20))
    k.wait_all(vm=False)
    make_srd(k, SRD_WS, 4, WS_SIZE)
    make_srd(k, SRD_A, 4, WS_SIZE)
    k.I("s_mul_i32", s(26), s(25), 9 * 512)
    k.I("s_add_u32", s(26), s(26), off["ST"])
    k.I("v_lshlrev_b32", v(vT), 3, v(vL))
    for c in range(9):
        k.I("buffer_load_dwordx2", v(TM + 2 * c, 2), v(vT), s(SRD_WS, 4), s(26), mods=offm(c * 512 if c < 8 else 0)) if c < 8 else None
    k.I("s_add_u32", s(27), s(26), 4096)
    k.I("buffer_load_dwordx2", v(P, 2), v(vT), s(SRD_WS, 4), s(27), mods="offen")
    k.I("s_mul_i32", s(30), s(24), 9 * TILE)
    k.I("s_mul_i32", s(31), s(20), 9216)
    k.I("s_add_u32", s(30), s(30), s(31))
    k.I("s_add_u32", s(30), s(30), off["W1"])
    k.I("s_mov_b32", s(32), s(31))
    k.I("s_mov_b32", s(33), 0)
    def wdma_ops(tag):
        ops = []
        def grp(i0, n):
            def f():
                k.I("s_add_u32", s(34), s(32), i0 * 1024)
                k.I("s_mov_b32", "m0", s(34))
                k.I("s_add_u32", s(35), s(30), i0 * 1024)
                for j in range(n):
                    k.I("buffer_load_dwordx4", v(vL16), s(SRD_A, 4), s(35), mods=offm(j * 1024, "lds"), tag=tag)
            return f
        ops.append(grp(0, 3)); ops.append(grp(3, 3)); ops.append(grp(6, 3))
        def adv():
            k.I("s_add_u32", s(30), s(30), TILE)
            k.I("s_add_u32", s(32), s(32), TILE)
            k.I("s_sub_u32", s(34), s(32), 4 * TILE)
            k.I("s_cmp_ge_u32", s(32), 4 * TILE)
            k.I("s_cselect_b32", s(32), s(34), s(32))
            k.I("s_add_u32", s(33), s(33), 1)
            k.I("s_cmp_ge_u32", s(33), 9)
            k.I("s_cselect_b32", s(SRD_A + 2), 0, s(SRD_A + 2))
        ops.append(adv)
        return ops
    for f in wdma_ops("Wp"): f()
    k.I("s_mul_i32", s(36), s(25), 36 * 1024)
    k.I("s_add_u32", s(36), s(36), off["XF"])
    for st in range(KS):
        k.I("buffer_load_dwordx4", v(XB + 4 * st, 4), v(vL16), s(SRD_WS, 4), s(36), mods=offm((st & 3) * 1024))
        if st & 3 == 3: k.I("s_add_u32", s(36), s(36), 4096)
    for f in wdma_ops("Wb"): f()
    for f in wdma_ops("Wa"): f()
    k.I("s_mul_i32", s(38), s(25), 288 * 1024)
    k.I("s_mul_i32", s(39), s(24), 18 * 1024)
    k.I("s_add_u32", s(38), s(38), s(39))
    k.I("s_add_u32", s(38), s(38), off["HF"])
    vS, vQ = vR, vR + 1
    k.I("v_add_f32", v(vS), v(TM), v(TM + 2))
    k.I("v_add_f32", v(vQ), v(TM + 1), v(TM + 3))
    for c in range(2, 8):
        k.I("v_add_f32", v(vS), v(vS), v(TM + 2 * c))
        k.I("v_add_f32", v(vQ), v(vQ), v(TM + 2 * c + 1))
    k.I("v_add_f32", v(vS), v(vS), v(P))
    k.I("v_add_f32", v(vQ), v(vQ), v(P + 1))
    for r in (vS, vQ):
        k.I("v_mov_b32", v(vT), v(r))
        k.I("v_permlane32_swap_b32", v(vT), v(r))
        k.I("v_add_f32", v(r), v(r), v(vT))
    k.I("v_mul_f32", v(vS), hexf(1.0 / D), v(vS))
    k.I("v_mul_f32", v(vQ), hexf(1.0 / D), v(vQ))
    k.I("v_fma_f32", v(vQ), "-" + v(vS), v(vS), v(vQ))
    k.I("v_max_f32", v(vQ), 0, v(vQ))
    k.I("v_add_f32", v(vQ), hexf(1e-5), v(vQ))
    k.I("v_rsq_f32", v(vQ), v(vQ))
    k.I("v_mul_f32", v(vQ), hexf(-LOG2E), v(vQ))
    k.I("v_mul_f32", v(vM), v(vS), v(vQ))
    k.I("v_sub_f32", v(vM), 0, v(vM))
    k.I("v_mov_b32", v(vR), v(vQ))
    def norm(st):
        for i in range(4):
            x = XB + 4 * st + i
            t = TM + 2 * (i & 1)
            k.I("v_lshlrev_b32", v(t), 16, v(x))
            k.I("v_and_b32", v(t + 1), "0xffff0000", v(x))
            k.I("v_pk_fma_f32", v(t, 2), v(t, 2), v(vR, 2), v(vM, 2), mods="op_sel_hi:[1,0,0]")
            k.I("v_cvt_pk_bf16_f32", v(x), v(t), v(t + 1))
    k.I("s_mov_b32", s(40), 0)
    def rd(st_abs):
        fr = FR + 4 * (st_abs % NFR)
        k.I("ds_read_b128", v(fr, 4), v(vA), mods=f"offset:{(st_abs % KS) * 1024}")
    def next_slot():
        k.I("s_add_u32", s(40), s(40), TILE)
        k.I("s_cmp_ge_u32", s(40), 4 * TILE)
        k.I("s_cselect_b32", s(40), 0, s(40))
        k.I("v_add_u32", v(vA), s(40), v(vL16))
    def epi_ops(acc):
        ops = []
        for i in range(16 + 3):
            if i < 16: ops.append(lambda i=i: k.I("v_exp_f32", v(TM + i), v(acc + i)))
            if 0 <= i - 1 < 16: ops.append(lambda i=i - 1: k.I("v_add_f32", v(TM + i), 1.0, v(TM + i)))
            if 0 <= i - 2 < 16: ops.append(lambda i=i - 2: k.I("v_rcp_f32", v(TM + i), v(TM + i)))
            if 0 <= i - 3 < 16:
                j = i - 3
                ops.append(lambda j=j: k.I("v_mul_f32", v(TM + j), v(acc + j), v(TM + j)))
                if j & 1: ops.append(lambda j=j: k.I("v_cvt_pk_bf16_f32", v(P + j // 2), v(TM + j - 1), v(TM + j)))
        def st():
            k.I("buffer_store_dwordx4", v(P, 4), v(vL16), s(SRD_WS, 4), s(38), mods="offen")
            k.I("buffer_store_dwordx4", v(P + 4, 4), v(vL16), s(SRD_WS, 4), s(38), mods="offen offset:1024")
            k.I("s_add_u32", s(38), s(38), 2048)
        ops.append(st)
        return ops
    def tile(par, first, wait_tag, dma_tag, last=False):
        acc = ACC + 16 * par
        main = []
        for st in range(KS):
            ops = []
            if first: ops.append(lambda st=st: norm(st))
            nx = st + PF
            if nx == KS and not last:
                def sync():
                    k.wait_tags(wait_tag)
                    k.I("s_barrier")
                    next_slot()
                ops.append(sync)
            if nx < KS or not last:
                ops.append(lambda nx=nx: rd(nx))
            ops.append(lambda st=st: mfma(k, acc, v(FR + 4 * (st % NFR), 4), v(XB + 4 * st, 4), st == 0))
            main.append(ops)
        fill = []
        if not first: fill = epi_ops(ACC + 16 * (1 - par))
        if not last:
            d = wdma_ops(dma_tag)
            main[KS - PF] += [d[0]]; main[KS - PF + 1] += [d[1]]; main[KS - PF + 2] += [d[2], d[3]]
        interleave(k, main, fill, 2, KS - PF - 1)
    k.I("v_mov_b32", v(vA), v(vL16))
    k.wait_tags("Wp")
    k.I("s_barrier")
    for st in range(PF): rd(st)
    tile(0, True, "Wb", "Wb")
    def body():
        tile(1, False, "Wa", "Wa")
        tile(0, False, "Wb", "Wb")
    k.loop(4, 41, body)
    for f in epi_ops(ACC): f()
    return finish(k), dict(nv=232, na=0)

def make_ffn2(name):
    k = begin(name)
    exit_if_ge(k, 2, 240)
    load_ptr(k, 4, 8)
    vL, vL16, vA, vX = 1, 2, 3, 4
    ACC, FR, P = 16, 112, 168
    NT = 6; STG = 20480; NB = 7
    wave_setup(k, vL, 20)
    k.I("v_lshlrev_b32", v(vL16), 4, v(vL))
    k.I("s_and_b32", s(21), s(2), 7)
    k.I("s_lshr_b32", s(22), s(2), 3)
    k.I("s_mul_i32", s(23), s(22), 21846)
    k.I("s_lshr_b32", s(23), s(23), 16)
    k.I("s_mul_i32", s(24), s(23), 3)
    k.I("s_sub_u32", s(24), s(22), s(24))
    k.I("s_mul_i32", s(21), s(21), 10)
    k.I("s_add_u32", s(23), s(23), s(21))
    k.I("s_lshr_b32", s(26), s(23), 4)
    k.I("s_and_b32", s(23), s(23), 15)
    k.I("s_lshl_b32", s(25), s(23), 2)
    k.I("s_add_u32", s(25), s(25), s(20))
    k.I("s_mul_i32", s(27), s(26), 58)
    k.I("s_cmp_eq_u32", s(26), 4)
    k.I("s_cselect_b32", s(28), 28, 29)
    k.wait_all(vm=False)
    make_srd(k, SRD_WS, 4, WS_SIZE)
    make_srd(k, SRD_A, 4, WS_SIZE)
    k.I("s_mul_i32", s(30), s(24), 288 * 6144)
    k.I("s_mul_i32", s(31), s(27), 6144)
    k.I("s_add_u32", s(30), s(30), s(31))
    k.I("s_mul_i32", s(31), s(20), 3072)
    k.I("s_add_u32", s(30), s(30), s(31))
    k.I("s_add_u32", s(30), s(30), off["W2"])
    k.I("s_mul_i32", s(32), s(25), 288)
    k.I("s_add_u32", s(32), s(32), s(27))
    k.I("s_lshl_b32", s(32), s(32), 10)
    k.I("s_add_u32", s(32), s(32), off["HF"])
    k.I("s_mov_b32", s(33), 0)
    k.I("s_lshl_b32", s(35), s(20), 11)
    k.I("s_add_u32", s(35), s(35), 12288)
    k.I("s_mov_b32", s(36), s(28))
    def issue(tag):
        k.I("s_add_u32", s(34), s(33), s(31))
        k.I("s_mov_b32", "m0", s(34))
        for j in range(3):
            k.I("buffer_load_dwordx4", v(vL16), s(SRD_A, 4), s(30), mods=offm(j * 1024, "lds"), tag=tag)
        k.I("s_add_u32", s(34), s(33), s(35))
        k.I("s_mov_b32", "m0", s(34))
        for j in range(2):
            k.I("buffer_load_dwordx4", v(vL16), s(SRD_A, 4), s(32), mods=offm(j * 1024, "lds"), tag=tag)
        k.I("s_add_u32", s(30), s(30), 2 * 6144)
        k.I("s_add_u32", s(32), s(32), 2048)
        k.I("s_add_u32", s(33), s(33), STG)
        k.I("s_cmp_ge_u32", s(33), NB * STG)
        k.I("s_cselect_b32", s(33), 0, s(33))
        k.I("s_sub_u32", s(36), s(36), 1)
        k.I("s_cmp_eq_u32", s(36), 0)
        k.I("s_cselect_b32", s(SRD_A + 2), 0, s(SRD_A + 2))
    for i in range(NB - 1): issue(f"S{i}")
    k.I("s_mov_b32", s(40), 0)
    def setbase():
        k.I("v_add_u32", v(vA), s(40), v(vL16))
        k.I("s_add_u32", s(42), s(40), s(35))
        k.I("v_add_u32", v(vX), s(42), v(vL16))
    def nextslot():
        k.I("s_add_u32", s(40), s(40), STG)
        k.I("s_cmp_ge_u32", s(40), NB * STG)
        k.I("s_cselect_b32", s(40), 0, s(40))
    def rd(setid, step):
        b = FR + 28 * setid
        ops = [lambda: k.I("ds_read_b128", v(b + 24, 4), v(vX), mods=f"offset:{step * 1024}")]
        for t in range(NT):
            ops.append(lambda t=t: k.I("ds_read_b128", v(b + 4 * t, 4), v(vA), mods=f"offset:{(step * NT + t) * 1024}"))
        return ops
    for i in range(96): k.I("v_mov_b32", v(ACC + i), 0)
    k.I("s_waitcnt", "vmcnt(25)")
    k.I("s_barrier")
    setbase()
    for f in rd(0, 0): f()
    def body():
        k.I("s_waitcnt", "vmcnt(20)")
        k.I("s_barrier")
        r = rd(1, 1)
        for t in range(NT):
            r[t]()
            if t == NT - 1: r[NT]()
            mfma(k, ACC + 16 * t, v(FR + 4 * t, 4), v(FR + 24, 4))
            if t == 1: issue("L")
        nextslot(); setbase()
        r = rd(0, 0)
        for t in range(NT):
            r[t]()
            if t == NT - 1: r[NT]()
            mfma(k, ACC + 16 * t, v(FR + 28 + 4 * t, 4), v(FR + 28 + 24, 4))
    lab = k.newlabel("LP")
    body_items = []
    k.stack.append(body_items)
    body()
    k.I("s_sub_u32", s(28), s(28), 1)
    k.I("s_cmp_lg_u32", s(28), 0)
    k.I("s_cbranch_scc1", lab)
    k.stack.pop()
    k.cur.append(Loop(lab, body_items, 29))
    k.I("s_mul_i32", s(43), s(26), XF_BYTES)
    k.I("s_mul_i32", s(44), s(25), 36 * 1024)
    k.I("s_add_u32", s(43), s(43), s(44))
    k.I("s_mul_i32", s(44), s(24), 12 * 1024)
    k.I("s_add_u32", s(43), s(43), s(44))
    k.I("s_add_u32", s(43), s(43), off["PART"])
    for t in range(NT):
        pb = P + 8 * (t & 1)
        for i in range(8):
            k.I("v_cvt_pk_bf16_f32", v(pb + i), v(ACC + 16 * t + 2 * i), v(ACC + 16 * t + 2 * i + 1))
        k.I("buffer_store_dwordx4", v(pb, 4), v(vL16), s(SRD_WS, 4), s(43), mods="offen")
        k.I("buffer_store_dwordx4", v(pb + 4, 4), v(vL16), s(SRD_WS, 4), s(43), mods="offen offset:1024")
        k.I("s_add_u32", s(43), s(43), 2048)
    return finish(k), dict(nv=184, na=0)
```

```python
from common import *

def mfma(k, d, A, B, first=False):
    c = "0" if first else v(d, 16)
    return k.I("v_mfma_f32_32x32x16_bf16", v(d, 16), A, B, c)

def wave_setup(k, vLane=1, sW=20):
    k.I("v_lshrrev_b32", v(vLane), 6, v(0))
    k.I("v_readfirstlane_b32", s(sW), v(vLane))
    k.I("v_and_b32", v(vLane), 63, v(0))

def offm(imm, extra=""):
    m = "offen" + (f" offset:{imm}" if imm else "")
    return m + (" " + extra if extra else "")

def dma(k, vaddr, soff, imm, tag):
    return k.I("buffer_load_dwordx4", v(vaddr), s(SRD_WS, 4), s(soff), mods=offm(imm, "lds"), tag=tag)

def t1_main(k, NT, swap, ACC, FR, vB, xop, CH=6):
    def rd(st):
        base = FR + (st & 1) * NT * 4
        for t in range(NT):
            o = (st * NT + t) * 1024
            k.I("ds_read_b128", v(base + 4 * t, 4), v(vB[o >> 16]), mods=f"offset:{o & 65535}")
    k.wait_tags("W0")
    k.I("s_barrier")
    rd(0)
    for st in range(KS):
        if st + 1 < KS:
            if (st + 1) % CH == 0:
                k.wait_tags(f"W{(st + 1) // CH}")
                k.I("s_barrier")
            rd(st + 1)
        base = FR + (st & 1) * NT * 4
        for t in range(NT):
            w = v(base + 4 * t, 4)
            if swap: mfma(k, ACC + 16 * t, xop(st), w, st == 0)
            else: mfma(k, ACC + 16 * t, w, xop(st), st == 0)

def t1_issue(k, NT, vL16, issue_x, sWsrc, sW, CH=6):
    nch = KS // CH
    per = CH * NT // 4
    k.I("s_mul_i32", s(30), s(sW), per * 1024)
    k.I("s_add_u32", s(31), s(sWsrc), s(30))
    for c in range(nch):
        issue_x(list(range(c * CH, (c + 1) * CH)))
        i = 0
        while i < per:
            n = min(4, per - i)
            k.I("s_mov_b32", "m0", s(30))
            for j in range(n):
                dma(k, vL16, 31, j * 1024, f"W{c}")
            i += n
            adv = n * 1024 if i < per else (CH * NT * 1024 - (per - n) * 1024)
            k.I("s_add_u32", s(30), s(30), adv)
            k.I("s_add_u32", s(31), s(31), adv)

QSCALE = LOG2E * DH ** -0.5

def make_qkv(name):
    k = begin(name)
    exit_if_ge(k, 2, 224)
    load_ptr(k, 4, 8)
    vL, vL16, vB1, vB2, vH, vN, vT, vO = 1, 2, 3, 4, 5, 6, 7, 8
    ACC, FR, P = 16, 80, 112
    wave_setup(k, vL, 20)
    k.I("v_lshlrev_b32", v(vL16), 4, v(vL))
    k.I("v_add_u32", v(vB1), 65536, v(vL16))
    k.I("v_add_u32", v(vB2), 131072, v(vL16))
    k.I("v_lshrrev_b32", v(vH), 5, v(vL))
    k.I("v_and_b32", v(vN), 31, v(vL))
    k.I("s_and_b32", s(21), s(2), 7)
    k.I("s_lshr_b32", s(22), s(2), 3)
    k.I("s_and_b32", s(23), s(21), 3)
    k.I("s_lshl_b32", s(23), s(23), 2)
    k.I("s_and_b32", s(24), s(22), 3)
    k.I("s_add_u32", s(23), s(23), s(24))
    k.I("s_lshr_b32", s(24), s(21), 2)
    k.I("s_mul_i32", s(24), s(24), 7)
    k.I("s_lshr_b32", s(25), s(22), 2)
    k.I("s_add_u32", s(24), s(24), s(25))
    k.I("s_lshl_b32", s(25), s(23), 2)
    k.I("s_add_u32", s(25), s(25), s(20))
    k.wait_all(vm=False)
    make_srd(k, SRD_WS, 4, WS_SIZE)
    k.I("s_mul_i32", s(26), s(25), 36 * 1024)
    k.I("s_add_u32", s(26), s(26), off["XN"])
    k.I("s_mul_i32", s(27), s(24), 4 * 36 * 1024)
    k.I("s_add_u32", s(27), s(27), off["WQKV"])
    def issue_x(steps):
        for st in steps:
            k.I("buffer_load_dwordx4", a(4 * st, 4), v(vL16), s(SRD_WS, 4), s(26), mods=offm((st & 3) * 1024))
            if st & 3 == 3: k.I("s_add_u32", s(26), s(26), 4096)
    t1_issue(k, 4, vL16, issue_x, 27, 20)
    k.I("s_cmp_ge_u32", s(24), 9)
    xop = lambda st: a(4 * st, 4)
    k.if_else("s_cbranch_scc1",
              lambda: t1_main(k, 4, False, ACC, FR, [vL16, vB1, vB2], xop),
              lambda: t1_main(k, 4, True, ACC, FR, [vL16, vB1, vB2], xop))
    k.I("s_lshr_b32", s(32), s(25), 3)
    k.I("s_and_b32", s(33), s(25), 7)
    k.I("s_mul_i32", s(34), s(32), KV_CHUNK)
    k.I("s_add_u32", s(34), s(34), off["KV"])
    k.I("s_mov_b32", s(35), hexf(QSCALE))
    def pack(t, scale):
        for i in range(8):
            if scale:
                k.I("v_mul_f32", v(ACC + 16 * t + 2 * i), s(35), v(ACC + 16 * t + 2 * i))
                k.I("v_mul_f32", v(ACC + 16 * t + 2 * i + 1), s(35), v(ACC + 16 * t + 2 * i + 1))
            k.I("v_cvt_pk_bf16_f32", v(P + 8 * t + i), v(ACC + 16 * t + 2 * i), v(ACC + 16 * t + 2 * i + 1))
    def epi_qmain():
        k.I("s_lshl_b32", s(36), s(24), 3)
        k.I("s_lshl_b32", s(36), s(36), 16)
        k.I("s_lshl_b32", s(37), s(25), 10)
        k.I("s_add_u32", s(36), s(36), s(37))
        k.I("s_add_u32", s(36), s(36), off["QM"])
        for t in range(4):
            pack(t, True)
            for u in range(2):
                k.I("buffer_store_dwordx4", v(P + 8 * t + 4 * u, 4), v(vL16), s(SRD_WS, 4), s(36), mods="offen")
                k.I("s_add_u32", s(36), s(36), 65536)
    def epi_kmain():
        k.I("s_sub_u32", s(36), s(24), 4)
        k.I("s_mul_i32", s(36), s(36), 8 * KV_HEAD)
        k.I("s_add_u32", s(36), s(36), s(34))
        k.I("s_lshl_b32", s(37), s(33), 10)
        k.I("s_add_u32", s(36), s(36), s(37))
        for t in range(4):
            pack(t, False)
            for u in range(2):
                k.I("buffer_store_dwordx4", v(P + 8 * t + 4 * u, 4), v(vL16), s(SRD_WS, 4), s(36), mods="offen")
                k.I("s_add_u32", s(36), s(36), KV_HEAD)
    def epi_extra():
        k.I("v_lshlrev_b32", v(vO), 14, v(vH))
        k.I("v_lshl_add_u32", v(vO), v(vN), 2, v(vO))
        k.I("s_lshl_b32", s(36), s(25), 7)
        k.I("s_add_u32", s(36), s(36), off["QE"])
        for t in range(2):
            pack(t, True)
            for i in range(8):
                hd = 16 * t + (i & 1) + 4 * (i >> 1)
                k.I("s_add_u32", s(37), s(36), hd * 8192)
                k.I("buffer_store_dword", v(P + 8 * t + i), v(vO), s(SRD_WS, 4), s(37), mods="offen")
        k.I("v_mul_u32_u24", v(vT), 2 * KV_HEAD, v(vH))
        k.I("v_lshl_add_u32", v(vT), v(vN), 2, v(vT))
        k.I("s_lshl_b32", s(36), s(33), 7)
        k.I("s_add_u32", s(36), s(36), s(34))
        k.I("s_add_u32", s(36), s(36), 8192)
        for t in range(2, 4):
            pack(t, False)
            for i in range(8):
                hd = 16 * (t - 2) + (i & 1) + 4 * (i >> 1)
                k.I("s_add_u32", s(37), s(36), hd * KV_HEAD)
                k.I("buffer_store_dword", v(P + 8 * t + i), v(vT), s(SRD_WS, 4), s(37), mods="offen")
    def epi_v():
        k.I("s_mul_i32", s(36), s(33), 1280)
        k.I("s_add_u32", s(36), s(36), s(34))
        k.I("s_add_u32", s(36), s(36), 9216)
        k.I("s_sub_u32", s(37), s(24), 9)
        k.I("s_lshl_b32", s(37), s(37), 7)
        k.I("v_mul_u32_u24", v(vO + 1), 320, v(vH))
        def tile(t):
            k.I("v_add_u32", v(vT), s(37), v(vN))
            if t: k.I("v_add_u32", v(vT), 32 * t, v(vT))
            k.I("v_mul_u32_u24", v(vO), 3641, v(vT))
            k.I("v_lshrrev_b32", v(vO), 16, v(vO))
            k.I("v_mul_u32_u24", v(vO + 2), 18, v(vO))
            k.I("v_sub_u32", v(vT), v(vT), v(vO + 2))
            k.I("v_mul_u32_u24", v(vO), KV_HEAD, v(vO))
            k.I("v_lshl_add_u32", v(vO), v(vT), 4, v(vO))
            k.I("v_add_u32", v(vO), v(vO), v(vO + 1))
            pack(t, False)
            k.I("buffer_store_dwordx4", v(P + 8 * t, 4), v(vO), s(SRD_WS, 4), s(36), mods="offen")
            k.I("buffer_store_dwordx4", v(P + 8 * t + 4, 4), v(vO), s(SRD_WS, 4), s(36), mods="offen offset:640")
        tile(0); tile(1)
        k.I("s_cmp_eq_u32", s(24), 13)
        k.I("s_cbranch_scc1", k.endlabel)
        tile(2); tile(3)
    k.switch(24, [(4, epi_qmain), (8, epi_kmain), (9, epi_extra), (None, epi_v)])
    return finish(k), dict(nv=144, na=144)

def make_wo(name):
    k = begin(name)
    exit_if_ge(k, 2, 144)
    load_ptr(k, 4, 8)
    vL, vL16, vB1, vH, vN, vT, vO = 1, 2, 3, 5, 6, 7, 8
    ACC, FR, XR, TM = 16, 48, 64, 80
    XE = 100
    wave_setup(k, vL, 20)
    k.I("v_lshlrev_b32", v(vL16), 4, v(vL))
    k.I("v_add_u32", v(vB1), 65536, v(vL16))
    k.I("v_lshrrev_b32", v(vH), 5, v(vL))
    k.I("v_and_b32", v(vN), 31, v(vL))
    k.I("s_and_b32", s(21), s(2), 7)
    k.I("s_lshr_b32", s(22), s(2), 3)
    k.I("s_lshl_b32", s(23), s(21), 1)
    k.I("s_and_b32", s(24), s(22), 1)
    k.I("s_add_u32", s(23), s(23), s(24))
    k.I("s_lshr_b32", s(24), s(22), 1)
    k.I("s_lshl_b32", s(25), s(23), 2)
    k.I("s_add_u32", s(25), s(25), s(20))
    k.wait_all(vm=False)
    make_srd(k, SRD_WS, 4, WS_SIZE)
    k.I("s_lshl_b32", s(26), s(25), 15)
    k.I("s_add_u32", s(26), s(26), off["OM"])
    k.I("s_mul_i32", s(27), s(24), 2 * 36 * 1024)
    k.I("s_add_u32", s(27), s(27), off["WO"])
    k.I("v_lshlrev_b32", v(vO), 15, v(vH))
    k.I("v_lshl_add_u32", v(vO), v(vN), 2, v(vO))
    k.I("s_lshl_b32", s(28), s(25), 7)
    k.I("s_add_u32", s(28), s(28), off["OE"])
    k.I("s_mul_i32", s(29), s(25), 36 * 1024)
    k.I("s_lshl_b32", s(32), s(24), 12)
    k.I("s_add_u32", s(29), s(29), s(32))
    k.I("s_add_u32", s(29), s(29), off["XF"])
    def issue_x(steps):
        for st in steps:
            if st < 32:
                k.I("buffer_load_dwordx4", a(4 * st, 4), v(vL16), s(SRD_WS, 4), s(26), mods=offm((st & 3) * 1024))
                if st & 3 == 3: k.I("s_add_u32", s(26), s(26), 4096)
            else:
                e = st - 32
                for i in range(4):
                    k.I("s_add_u32", s(33), s(28), (8 * e + i) * 8192)
                    k.I("buffer_load_dword", v(XE + 4 * e + i), v(vO), s(SRD_WS, 4), s(33), mods="offen")
    t1_issue(k, 2, vL16, issue_x, 27, 20)
    for g in range(4):
        k.I("buffer_load_dwordx4", v(XR + 4 * g, 4), v(vL16), s(SRD_WS, 4), s(29), mods=offm(g * 1024))
    xop = lambda st: a(4 * st, 4) if st < 32 else v(XE + 4 * (st - 32), 4)
    t1_main(k, 2, False, ACC, FR, [vL16, vB1], xop)
    vS, vQ = TM, TM + 1
    for i in range(16):
        k.I("v_lshlrev_b32", v(TM + 2), 16, v(XR + i))
        k.I("v_and_b32", v(TM + 3), "0xffff0000", v(XR + i))
        k.I("v_add_f32", v(ACC + 2 * i), v(ACC + 2 * i), v(TM + 2))
        k.I("v_add_f32", v(ACC + 2 * i + 1), v(ACC + 2 * i + 1), v(TM + 3))
        k.I("v_cvt_pk_bf16_f32", v(XR + i), v(ACC + 2 * i), v(ACC + 2 * i + 1))
        k.I("v_lshlrev_b32", v(TM + 2), 16, v(XR + i))
        k.I("v_and_b32", v(TM + 3), "0xffff0000", v(XR + i))
        if i == 0:
            k.I("v_add_f32", v(vS), v(TM + 2), v(TM + 3))
            k.I("v_mul_f32", v(vQ), v(TM + 2), v(TM + 2))
        else:
            k.I("v_add_f32", v(vS), v(vS), v(TM + 2))
            k.I("v_fmac_f32", v(vQ), v(TM + 2), v(TM + 2))
            k.I("v_add_f32", v(vS), v(vS), v(TM + 3))
        k.I("v_fmac_f32", v(vQ), v(TM + 3), v(TM + 3))
    for g in range(4):
        k.I("buffer_store_dwordx4", v(XR + 4 * g, 4), v(vL16), s(SRD_WS, 4), s(29), mods=offm(g * 1024))
    k.I("s_mul_i32", s(32), s(25), 9)
    k.I("s_add_u32", s(32), s(32), s(24))
    k.I("s_lshl_b32", s(32), s(32), 9)
    k.I("s_add_u32", s(32), s(32), off["ST"])
    k.I("v_lshlrev_b32", v(vT), 3, v(vL))
    k.I("buffer_store_dwordx2", v(vS, 2), v(vT), s(SRD_WS, 4), s(32), mods="offen")
    return finish(k), dict(nv=120, na=128)
```

```python
from common import *

NLN2 = -0.6931471805599453
def red_body(k, mode, wg=2):
    vT, vN, vP, vOff, vRow = 0, 1, 2, 3, 4
    k.I("v_and_b32", v(vN), 7, v(vT))
    k.I("v_lshrrev_b32", v(vP), 3, v(vT))
    k.I("s_lshr_b32", s(20), s(wg), 2)
    k.I("s_and_b32", s(21), s(wg), 3)
    k.I("s_lshl_b32", s(21), s(21), 3)
    k.I("s_mul_i32", s(22), s(20), 36864)
    k.I("s_lshl_b32", s(23), s(21), 4)
    k.I("s_add_u32", s(22), s(22), s(23))
    k.I("v_lshlrev_b32", v(vOff), 9, v(vP))
    k.I("v_lshl_add_u32", v(vOff), v(vN), 4, v(vOff))
    if mode in (0, 2):
        k.I("s_lshl_b32", s(24), s(wg), 3)
        k.I("v_add_u32", v(vRow), s(24), v(vN))
        k.I("v_mul_u32_u24", v(vRow), 1152, v(vRow))
        k.I("v_lshl_add_u32", v(vRow), v(vP), 4, v(vRow))
    X = 8
    P = 20
    A = 80
    T = 104
    if mode == 0:
        for i in range(3):
            k.I("buffer_load_dwordx4", v(X + 4 * i, 4), v(vRow), s(SRD_A, 4), 0, mods=f"offen offset:{i*24*16}")
    else:
        k.I("s_add_u32", s(25), s(22), off["XF"])
        for i in range(3):
            if i: k.I("s_add_u32", s(25), s(25), 24 * 512)
            k.I("buffer_load_dwordx4", v(X + 4 * i, 4), v(vOff), s(SRD_WS, 4), s(25), mods="offen")
        for q in range(5):
            k.I("s_add_u32", s(25), s(22), off["PART"] + q * XF_BYTES)
            for i in range(3):
                if i: k.I("s_add_u32", s(25), s(25), 24 * 512)
                k.I("buffer_load_dwordx4", v(P + (q * 3 + i) * 4, 4), v(vOff), s(SRD_WS, 4), s(25), mods="offen")
    if mode == 0:
        for i in range(12):
            k.I("v_lshlrev_b32", v(A + 2 * i), 16, v(X + i))
            k.I("v_and_b32", v(A + 2 * i + 1), "0xffff0000", v(X + i))
    else:
        for q in range(5):
            for i in range(12):
                src = P + q * 12 + i
                if q == 0:
                    k.I("v_lshlrev_b32", v(A + 2 * i), 16, v(src))
                    k.I("v_and_b32", v(A + 2 * i + 1), "0xffff0000", v(src))
                else:
                    k.I("v_lshlrev_b32", v(T), 16, v(src))
                    k.I("v_and_b32", v(T + 1), "0xffff0000", v(src))
                    k.I("v_add_f32", v(A + 2 * i), v(A + 2 * i), v(T))
                    k.I("v_add_f32", v(A + 2 * i + 1), v(A + 2 * i + 1), v(T + 1))
        k.I("s_mov_b32", s(26), hexf(NLN2))
        for i in range(12):
            k.I("v_lshlrev_b32", v(T), 16, v(X + i))
            k.I("v_and_b32", v(T + 1), "0xffff0000", v(X + i))
            k.I("v_fma_f32", v(A + 2 * i), v(A + 2 * i), s(26), v(T))
            k.I("v_fma_f32", v(A + 2 * i + 1), v(A + 2 * i + 1), s(26), v(T + 1))
        for i in range(12):
            k.I("v_cvt_pk_bf16_f32", v(X + i), v(A + 2 * i), v(A + 2 * i + 1))
        if mode == 2:
            for i in range(3):
                k.I("buffer_store_dwordx4", v(X + 4 * i, 4), v(vRow), s(SRD_A, 4), 0, mods=f"offen offset:{i*24*16}")
            return
        for i in range(12):
            k.I("v_lshlrev_b32", v(A + 2 * i), 16, v(X + i))
            k.I("v_and_b32", v(A + 2 * i + 1), "0xffff0000", v(X + i))
    k.I("s_add_u32", s(25), s(22), off["XF"])
    for i in range(3):
        if i: k.I("s_add_u32", s(25), s(25), 24 * 512)
        k.I("buffer_store_dwordx4", v(X + 4 * i, 4), v(vOff), s(SRD_WS, 4), s(25), mods="offen")
    vS, vQ = T + 2, T + 3
    k.I("v_add_f32", v(vS), v(A), v(A + 1))
    k.I("v_mul_f32", v(vQ), v(A), v(A))
    k.I("v_fmac_f32", v(vQ), v(A + 1), v(A + 1))
    for i in range(2, 24):
        k.I("v_add_f32", v(vS), v(vS), v(A + i))
        k.I("v_fmac_f32", v(vQ), v(A + i), v(A + i))
    for r in (vS, vQ):
        k.I("v_add_f32_dpp", v(r), v(r), v(r), mods="row_ror:8 row_mask:0xf bank_mask:0xf")
    for r in (vS, vQ):
        k.I("v_mov_b32", v(T), v(r))
        k.I("v_permlane16_swap_b32", v(T), v(r))
        k.I("v_add_f32", v(r), v(r), v(T))
    for r in (vS, vQ):
        k.I("v_mov_b32", v(T), v(r))
        k.I("v_permlane32_swap_b32", v(T), v(r))
        k.I("v_add_f32", v(r), v(r), v(T))
    k.I("v_lshrrev_b32", v(T), 6, v(vT))
    k.I("v_lshlrev_b32", v(T), 6, v(T))
    k.I("v_lshl_add_u32", v(T), v(vN), 3, v(T))
    k.I("ds_write_b64", v(T), v(vS, 2))
    k.I("s_barrier")
    k.I("v_lshlrev_b32", v(T), 3, v(vN))
    k.I("ds_read_b64", v(T + 4, 2), v(T))
    k.I("ds_read_b64", v(T + 6, 2), v(T), mods="offset:64")
    k.I("ds_read_b64", v(T + 8, 2), v(T), mods="offset:128")
    k.I("v_add_f32", v(vS), v(T + 4), v(T + 6))
    k.I("v_add_f32", v(vQ), v(T + 5), v(T + 7))
    k.I("v_add_f32", v(vS), v(vS), v(T + 8))
    k.I("v_add_f32", v(vQ), v(vQ), v(T + 9))
    k.I("v_mul_f32", v(vS), hexf(1.0 / D), v(vS))
    k.I("v_mul_f32", v(vQ), hexf(1.0 / D), v(vQ))
    k.I("v_fma_f32", v(vQ), "-" + v(vS), v(vS), v(vQ))
    k.I("v_max_f32", v(vQ), 0, v(vQ))
    k.I("v_add_f32", v(vQ), hexf(1e-5), v(vQ))
    k.I("v_rsq_f32", v(vQ), v(vQ))
    k.I("v_mul_f32", v(vS), v(vS), v(vQ))
    for i in range(24):
        k.I("v_fma_f32", v(A + i), v(A + i), v(vQ), "-" + v(vS))
    for i in range(12):
        k.I("v_cvt_pk_bf16_f32", v(X + i), v(A + 2 * i), v(A + 2 * i + 1))
    k.I("s_add_u32", s(25), s(22), off["XN"])
    for i in range(3):
        if i: k.I("s_add_u32", s(25), s(25), 24 * 512)
        k.I("buffer_store_dwordx4", v(X + 4 * i, 4), v(vOff), s(SRD_WS, 4), s(25), mods="offen")

def make_red(name, mode):
    k = begin(name)
    exit_if_ge(k, 2, 256)
    load_ptr(k, 4, 8)
    load_ptr(k, 6, 6)
    k.wait_all(vm=False)
    make_srd(k, SRD_WS, 4, WS_SIZE)
    make_srd(k, SRD_A, 6, S * D * 2)
    red_body(k, mode)
    return finish(k)

def make_prep(name):
    k = begin(name)
    exit_if_ge(k, 2, 256 + 270 + 32)
    k.I("s_load_dwordx4", s(36, 4), s(0, 2), 0)
    k.I("s_load_dwordx2", s(40, 2), s(0, 2), 16)
    k.I("s_load_dwordx4", s(44, 4), s(0, 2), 32)
    load_ptr(k, 4, 8)
    k.wait_all(vm=False)
    make_srd(k, SRD_WS, 4, WS_SIZE)
    Lw = k.newlabel("W"); Lo = k.newlabel("O")
    k.I("s_cmp_ge_u32", s(2), 256)
    k.I("s_cbranch_scc1", Lw)
    make_srd(k, SRD_A, 36, S * D * 2)
    k.I("v_cmp_gt_u32", "vcc", 192, v(0))
    k.I("s_and_saveexec_b64", s(30, 2), "vcc")
    k.I("s_cbranch_execz", k.endlabel + "_b")
    red_body(k, 0)
    k.I("s_endpgm")
    k.label(k.endlabel + "_b")
    k.I("s_barrier")
    k.I("s_endpgm")
    k.label(Lw)
    k.I("s_cmp_ge_u32", s(2), 256 + 270)
    k.I("s_cbranch_scc1", Lo)
    vL, vM, vH, vCol, vOff, vT = 1, 2, 3, 4, 5, 6
    k.I("v_and_b32", v(vL), 63, v(0))
    k.I("v_and_b32", v(vM), 31, v(0))
    k.I("v_bfe_u32", v(vH), v(0), 5, 1)
    k.I("v_lshrrev_b32", v(vT), 6, v(0))
    k.I("v_readfirstlane_b32", s(20), v(vT))
    k.I("s_sub_u32", s(21), s(2), 256)
    k.I("s_lshl_b32", s(21), s(21), 2)
    k.I("s_add_u32", s(21), s(21), s(20))
    vPi = 7
    k.I("v_and_b32", v(vPi), 0x13, v(vM))
    k.I("v_and_b32", v(vT), 4, v(vM))
    k.I("v_lshl_or_b32", v(vPi), v(vT), 1, v(vPi))
    k.I("v_and_b32", v(vT), 8, v(vM))
    k.I("v_lshrrev_b32", v(vT), 1, v(vT))
    k.I("v_or_b32", v(vPi), v(vPi), v(vT))
    Lq = k.newlabel("Q"); Lwo = k.newlabel("WO"); Lw1 = k.newlabel("W1"); Lw2 = k.newlabel("W2"); Lgo = k.newlabel("GO")
    k.I("s_cmp_lt_u32", s(21), 162); k.I("s_cbranch_scc1", Lq)
    k.I("s_cmp_lt_u32", s(21), 216); k.I("s_cbranch_scc1", Lwo)
    k.I("s_cmp_lt_u32", s(21), 648); k.I("s_cbranch_scc1", Lw1)
    k.I("s_branch", Lw2)
    def div3(dst_q, dst_r, src):
        k.I("s_mul_i32", s(dst_q), s(src), 21846)
        k.I("s_lshr_b32", s(dst_q), s(dst_q), 16)
        k.I("s_mul_i32", s(dst_r), s(dst_q), 3)
        k.I("s_sub_u32", s(dst_r), s(src), s(dst_r))
    k.label(Lq)
    div3(22, 23, 21)
    make_srd(k, SRD_A, 38, D * 3 * D * 2)
    k.I("s_mov_b32", s(50), 3456)
    k.I("s_lshr_b32", s(24), s(22), 2)
    k.I("s_and_b32", s(25), s(22), 3)
    k.I("s_mul_i32", s(51), s(24), 4 * 36 * 1024)
    k.I("s_mov_b32", s(52), 4096)
    k.I("s_lshl_b32", s(26), s(25), 10)
    k.I("s_add_u32", s(51), s(51), s(26))
    k.I("s_mul_i32", s(26), s(23), 12)
    k.I("s_mul_i32", s(27), s(26), s(52))
    k.I("s_add_u32", s(51), s(51), s(27))
    k.I("s_add_u32", s(51), s(51), off["WQKV"])
    k.I("s_lshl_b32", s(53), s(26), 4)
    k.I("s_mov_b32", s(55), 0)
    Lqm = k.newlabel("QM"); Lqe = k.newlabel("QE"); Lv = k.newlabel("V")
    k.I("s_cmp_lt_u32", s(22), 32); k.I("s_cbranch_scc1", Lqm)
    k.I("s_cmp_lt_u32", s(22), 36); k.I("s_cbranch_scc1", Lqe)
    k.label(Lv)
    k.I("s_sub_u32", s(27), s(22), 36)
    k.I("s_lshl_b32", s(27), s(27), 5)
    k.I("s_add_u32", s(27), s(27), 1152)
    k.I("v_add_u32", v(vCol), s(27), v(vM))
    k.I("s_branch", Lgo)
    k.label(Lqm)
    k.I("s_lshr_b32", s(27), s(22), 4)
    k.I("s_mul_i32", s(27), s(27), 576)
    k.I("s_and_b32", s(28), s(22), 15)
    k.I("s_mul_i32", s(28), s(28), 36)
    k.I("s_add_u32", s(27), s(27), s(28))
    k.I("v_lshrrev_b32", v(vT), 4, v(vM))
    k.I("v_mul_u32_u24", v(vT), 18, v(vT))
    k.I("v_and_b32", v(vCol), 15, v(vM))
    k.I("v_add3_u32", v(vCol), v(vCol), v(vT), s(27))
    k.I("s_branch", Lgo)
    k.label(Lqe)
    k.I("s_sub_u32", s(27), s(22), 32)
    k.I("s_lshr_b32", s(28), s(27), 1)
    k.I("s_mul_i32", s(28), s(28), 576)
    k.I("s_and_b32", s(27), s(27), 1)
    k.I("s_mul_i32", s(27), s(27), 288)
    k.I("s_add_u32", s(27), s(27), s(28))
    k.I("s_add_u32", s(27), s(27), 16)
    k.I("v_lshrrev_b32", v(vT), 1, v(vM))
    k.I("v_mul_u32_u24", v(vT), 18, v(vT))
    k.I("v_and_b32", v(vCol), 1, v(vM))
    k.I("v_add3_u32", v(vCol), v(vCol), v(vT), s(27))
    k.I("s_branch", Lgo)
    k.label(Lwo)
    k.I("s_sub_u32", s(21), s(21), 162)
    div3(22, 23, 21)
    make_srd(k, SRD_A, 40, D * D * 2)
    k.I("s_mov_b32", s(50), 1152)
    k.I("s_lshr_b32", s(24), s(22), 1)
    k.I("s_and_b32", s(25), s(22), 1)
    k.I("s_mul_i32", s(51), s(24), 2 * 36 * 1024)
    k.I("s_mov_b32", s(52), 2048)
    k.I("s_lshl_b32", s(26), s(25), 10)
    k.I("s_add_u32", s(51), s(51), s(26))
    k.I("s_mul_i32", s(26), s(23), 12)
    k.I("s_mul_i32", s(27), s(26), 2048)
    k.I("s_add_u32", s(51), s(51), s(27))
    k.I("s_add_u32", s(51), s(51), off["WO"])
    k.I("s_mov_b32", s(53), s(26))
    k.I("s_mov_b32", s(55), 1)
    k.I("s_lshl_b32", s(27), s(22), 5)
    k.I("v_add_u32", v(vCol), s(27), v(vPi))
    k.I("s_branch", Lgo)
    k.label(Lw1)
    k.I("s_sub_u32", s(21), s(21), 216)
    div3(22, 23, 21)
    make_srd(k, SRD_A, 44, D * F * 2)
    k.I("s_mov_b32", s(50), 9216)
    k.I("s_mul_i32", s(51), s(22), 36 * 1024)
    k.I("s_mov_b32", s(52), 1024)
    k.I("s_mul_i32", s(26), s(23), 12)
    k.I("s_lshl_b32", s(27), s(26), 10)
    k.I("s_add_u32", s(51), s(51), s(27))
    k.I("s_add_u32", s(51), s(51), off["W1"])
    k.I("s_lshl_b32", s(53), s(26), 4)
    k.I("s_mov_b32", s(55), 0)
    k.I("s_lshl_b32", s(27), s(22), 5)
    k.I("v_add_u32", v(vCol), s(27), v(vPi))
    k.I("s_branch", Lgo)
    k.label(Lw2)
    k.I("s_sub_u32", s(21), s(21), 648)
    k.I("s_mul_i32", s(23), s(21), 3641)
    k.I("s_lshr_b32", s(23), s(23), 16)
    k.I("s_mul_i32", s(22), s(23), 18)
    k.I("s_sub_u32", s(22), s(21), s(22))
    make_srd(k, SRD_A, 46, D * F * 2)
    k.I("s_mov_b32", s(50), 1152)
    k.I("s_mul_i32", s(24), s(22), 10923)
    k.I("s_lshr_b32", s(24), s(24), 16)
    k.I("s_mul_i32", s(25), s(24), 6)
    k.I("s_sub_u32", s(25), s(22), s(25))
    k.I("s_mul_i32", s(51), s(24), 288 * 6 * 1024)
    k.I("s_mov_b32", s(52), 6144)
    k.I("s_lshl_b32", s(26), s(25), 10)
    k.I("s_add_u32", s(51), s(51), s(26))
    k.I("s_mul_i32", s(26), s(23), 12)
    k.I("s_mul_i32", s(27), s(26), 6144)
    k.I("s_add_u32", s(51), s(51), s(27))
    k.I("s_add_u32", s(51), s(51), off["W2"])
    k.I("s_lshl_b32", s(53), s(26), 4)
    k.I("s_mov_b32", s(55), 0)
    k.I("s_lshl_b32", s(27), s(22), 5)
    k.I("v_add_u32", v(vCol), s(27), v(vPi))
    k.label(Lgo)
    DAT = 16
    TMP = 64
    Lm1 = k.newlabel("M1"); Lst = k.newlabel("ST")
    k.I("s_cmp_eq_u32", s(55), 1); k.I("s_cbranch_scc1", Lm1)
    k.I("v_lshlrev_b32", v(vT), 3, v(vH))
    k.I("v_mul_lo_u32", v(vT), v(vT), s(50))
    k.I("v_lshl_add_u32", v(vOff), v(vCol), 1, v(vT))
    k.I("s_mul_i32", s(56), s(53), s(50))
    for i in range(12):
        for j in range(8):
            k.I("buffer_load_ushort", v(TMP + 8 * i + j), v(vOff), s(SRD_A, 4), s(56), mods="offen")
            k.I("s_add_u32", s(56), s(56), s(50))
        k.I("s_lshl_b32", s(57), s(50), 3)
        k.I("s_add_u32", s(56), s(56), s(57))
    k.I("s_branch", Lst)
    k.label(Lm1)
    vOffM, vOffE = 8, 9
    k.I("v_mul_u32_u24", v(vT), 4 * 1152, v(vH))
    k.I("v_lshl_add_u32", v(vOffM), v(vCol), 1, v(vT))
    k.I("v_mul_u32_u24", v(vT), 72 * 1152, v(vH))
    k.I("v_lshl_add_u32", v(vOffE), v(vCol), 1, v(vT))
    for i in range(12):
        Le = k.newlabel("E"); Ln = k.newlabel("N")
        k.I("s_add_u32", s(57), s(53), i)
        k.I("s_cmp_ge_u32", s(57), 32); k.I("s_cbranch_scc1", Le)
        k.I("s_mul_i32", s(56), s(57), 18 * 1152)
        for j in range(8):
            r = (j & 3) + 8 * (j >> 2)
            k.I("s_add_u32", s(58), s(56), r * 1152)
            k.I("buffer_load_ushort", v(TMP + 8 * i + j), v(vOffM), s(SRD_A, 4), s(58), mods="offen")
        k.I("s_branch", Ln)
        k.label(Le)
        k.I("s_sub_u32", s(57), s(57), 32)
        k.I("s_mul_i32", s(56), s(57), 144 * 1152)
        for j in range(8):
            r = 18 * (j >> 1) + 16 + (j & 1)
            k.I("s_add_u32", s(58), s(56), r * 1152)
            k.I("buffer_load_ushort", v(TMP + 8 * i + j), v(vOffE), s(SRD_A, 4), s(58), mods="offen")
        k.label(Ln)
    k.label(Lst)
    k.wait_all(lgkm=False)
    for i in range(48):
        k.I("v_lshl_or_b32", v(DAT + i), v(TMP + 2 * i + 1), 16, v(TMP + 2 * i))
    k.I("v_lshlrev_b32", v(vOff), 4, v(vL))
    for i in range(12):
        k.I("buffer_store_dwordx4", v(DAT + 4 * i, 4), v(vOff), s(SRD_WS, 4), s(51), mods="offen")
        k.I("s_add_u32", s(51), s(51), s(52))
    k.I("s_endpgm")
    k.label(Lo)
    k.I("s_sub_u32", s(20), s(2), 526)
    k.I("s_mul_i32", s(20), s(20), KV_HEAD)
    k.I("s_add_u32", s(20), s(20), off["KV"])
    k.I("v_lshrrev_b32", v(1), 1, v(0))
    k.I("v_lshrrev_b32", v(2), 4, v(1))
    k.I("v_mul_u32_u24", v(2), KV_CHUNK, v(2))
    k.I("v_and_b32", v(1), 15, v(1))
    k.I("v_mul_u32_u24", v(1), 640, v(1))
    k.I("v_and_b32", v(3), 1, v(0))
    k.I("v_mul_u32_u24", v(3), 320, v(3))
    k.I("v_add3_u32", v(1), v(1), v(2), v(3))
    k.I("v_add_u32", v(1), 9216 + 18 * 16, v(1))
    for i in range(4):
        k.I("v_mov_b32", v(4 + i), "0x3f803f80")
        k.I("v_mov_b32", v(8 + i), 0)
    k.I("buffer_store_dwordx4", v(4, 4), v(1), s(SRD_WS, 4), s(20), mods="offen")
    k.I("buffer_store_dwordx4", v(8, 4), v(1), s(SRD_WS, 4), s(20), mods="offen offset:16")
    return finish(k)
```

```python
import sys
from common import *
import k_prep, k_gemm1, k_ffn, k_attn

def build(out, nlaunch=None, extra_launches=0):
    kernels = []
    def add(res, nv=None, na=0):
        if isinstance(res, tuple): k, d = res; kernels.append((k, d["nv"], d["na"]))
        else: kernels.append((res, nv, na))
    add(k_prep.make_prep("prep_kernel"), 160)
    add(k_gemm1.make_qkv("qkv_kernel"))
    add(k_attn.make_attn("attn_kernel"))
    add(k_gemm1.make_wo("wo_kernel"))
    add(k_ffn.make_ffn1("ffn1_kernel"))
    add(k_ffn.make_ffn2("ffn2_kernel"))
    add(k_prep.make_red("redmid_kernel", 1), 116)
    add(k_prep.make_red("redlast_kernel", 2), 116)
    L = []
    L.append(("prep_kernel", 558, 256, 1024))
    for layer in range(2):
        L.append(("qkv_kernel", 224, 256, 147456))
        L.append(("attn_kernel", 256, 512, 163840))
        L.append(("wo_kernel", 144, 256, 73728))
        L.append(("ffn1_kernel", 256, 256, 147456))
        L.append(("ffn2_kernel", 240, 256, 143360))
        L.append(("redmid_kernel" if layer == 0 else "redlast_kernel", 256, 192, 1024))
    t = []
    hdr = open("interleave_layers__mha_block__dense_activation_silu__prompt.s.ref").read().split("\n")
    for line in hdr:
        if line.startswith("; Override") : break
        t.append(line)
    for (n, g, b, l) in L:
        t.append(f"; @launch kernel={n} grid=({g},1,1) block=({b},1,1) lds={l}")
    t.append('.amdgcn_target "amdgcn-amd-amdhsa--gfx950"')
    t.append(".text")
    for k, nv, na in kernels:
        t.append(kernel_text(k, nv, na))
    t.append('.section .rodata,"a"')
    for k, nv, na in kernels:
        t.append(".p2align 6")
        t.append(descriptor(k.name, nv, na))
    open(out, "w").write("\n".join(t))
    return L

if __name__ == "__main__":
    out = sys.argv[1] if len(sys.argv) > 1 else "interleave_layers__mha_block__dense_activation_silu__prompt.s"
    build(out)
    print("written", out, "ws used", WS_USED)
```

```python
import re

def R(kind, lo, n=1):
    return f"{kind}{lo}" if n == 1 else f"{kind}[{lo}:{lo+n-1}]"
def v(lo, n=1): return R("v", lo, n)
def a(lo, n=1): return R("a", lo, n)
def s(lo, n=1): return R("s", lo, n)

_reg_re = re.compile(r"^(-|abs\(|\|)?([vas])(\d+|\[(\d+):(\d+)\])\)?\|?$")
def regs_of(tok):
    tok = tok.strip()
    if tok in ("vcc", "exec", "m0", "scc"): return [(tok, 0)]
    if tok in ("vcc_lo", "vcc_hi"): return [("vcc", 0)]
    if tok in ("exec_lo", "exec_hi"): return [("exec", 0)]
    m = _reg_re.match(tok)
    if not m: return []
    k = m.group(2)
    if m.group(4) is not None:
        return [(k, i) for i in range(int(m.group(4)), int(m.group(5)) + 1)]
    return [(k, int(m.group(3)))]

TRANS = ("v_exp_", "v_log_", "v_rcp_", "v_rsq_", "v_sqrt_", "v_sin_", "v_cos_")

import os as _os
STFLAG = _os.environ.get("STFLAG", "")
class Ins:
    __slots__ = ("op", "args", "mods", "kind", "rd", "wr", "tag", "waits", "nops", "wait_vm", "wait_lgkm", "comment", "needtags", "passes")
    def __init__(self, op, args, mods="", tag=None, comment=None):
        if op == "buffer_store_dwordx4":
            if "plain" in mods: mods = mods.replace("plain", "").strip()
            else: mods = (mods + " " + (STFLAG or "sc1")).strip()
        self.op = op; self.args = list(args); self.mods = mods; self.tag = tag; self.comment = comment
        self.nops = 0; self.wait_vm = None; self.wait_lgkm = None; self.needtags = None; self.passes = 0
        self.classify()
    def text(self):
        t = self.op
        if self.args: t += " " + ", ".join(str(x) for x in self.args)
        if self.mods: t += " " + self.mods
        if self.comment: t += "  ; " + self.comment
        return t
    def classify(self):
        op = self.op; A = [str(x) for x in self.args]
        rd = []; wr = []
        r = lambda i: regs_of(A[i]) if i < len(A) else []
        allr = lambda st: [x for i in range(st, len(A)) for x in regs_of(A[i])]
        lds = " lds" in (" " + self.mods)
        if op.startswith("v_mfma"):
            self.kind = "mfma"; wr = r(0); rd = allr(1)
            self.passes = 8 if "32x32" in op else 4
        elif op.startswith("buffer_load") or op.startswith("global_load"):
            if lds or "load_lds" in op:
                self.kind = "dma"; rd = allr(0) + [("m0", 0)]
            else:
                self.kind = "vmem_ld"; wr = r(0); rd = allr(1)
                if "d16" in op: rd += r(0)
        elif op.startswith("buffer_store") or op.startswith("global_store"):
            self.kind = "vmem_st"; rd = allr(0)
        elif op.startswith("buffer_atomic") or op.startswith("global_atomic"):
            self.kind = "vmem_at"; rd = allr(0)
            if "sc0" in self.mods: wr = r(0)
        elif op in ("buffer_wbl2", "buffer_inv"):
            self.kind = "vmem_st"
        elif op.startswith("ds_read") or op.startswith("ds_bpermute") or op.startswith("ds_swizzle") or op.startswith("ds_permute"):
            self.kind = "ds_ld"; wr = r(0); rd = allr(1)
            if "d16" in op: rd += r(0)
        elif op.startswith("ds_write") or op.startswith("ds_add") or op.startswith("ds_max"):
            self.kind = "ds_st"; rd = allr(0)
        elif op.startswith("s_load") or op.startswith("s_memtime") or op.startswith("s_memrealtime"):
            self.kind = "smem"; wr = r(0); rd = allr(1)
        elif op in ("s_waitcnt", "s_barrier", "s_nop", "s_setprio", "s_sleep", "s_endpgm"):
            self.kind = "misc"
        elif op.startswith("s_cbranch") or op == "s_branch":
            self.kind = "branch"
            if "scc" in op: rd = [("scc", 0)]
            if "vcc" in op: rd = [("vcc", 0)]
            if "exec" in op: rd = [("exec", 0)]
        elif op.startswith("s_cmp") or op.startswith("s_bitcmp"):
            self.kind = "salu"; rd = allr(0); wr = [("scc", 0)]
        elif op.startswith("s_"):
            self.kind = "salu"; wr = r(0); rd = allr(1)
            if "saveexec" in op: wr += [("exec", 0)]; rd += [("exec", 0)]
            if op.startswith(("s_add", "s_sub", "s_and", "s_or", "s_xor", "s_lshl", "s_lshr", "s_ashr", "s_min", "s_max", "s_not", "s_andn2", "s_bfe", "s_mul_i", "s_abs")) and not op.startswith("s_mul"):
                wr += [("scc", 0)]
            if op.startswith(("s_addc", "s_subb", "s_cselect", "s_cmov")): rd += [("scc", 0)]
            if op in ("s_addk_i32", "s_mulk_i32"): rd += r(0)
        elif op.startswith("v_"):
            self.kind = "valu"
            if op.startswith("v_cmp"):
                wr = r(0); rd = allr(1)
                if op.startswith("v_cmpx"): wr += [("exec", 0)]
            elif op.startswith("v_readfirstlane") or op.startswith("v_readlane"):
                wr = r(0); rd = allr(1)
            elif op.startswith("v_permlane") and "swap" in op:
                wr = r(0) + r(1); rd = r(0) + r(1)
            elif op.startswith(("v_add_co", "v_sub_co", "v_addc_co", "v_subb_co", "v_subrev_co")):
                wr = r(0) + r(1); rd = allr(2)
            elif op.startswith("v_cndmask"):
                wr = r(0); rd = allr(1)
                if len(A) == 3: rd += [("vcc", 0)]
            else:
                wr = r(0); rd = allr(1)
                if op.startswith(("v_fmac", "v_dot2c", "v_pk_fmac", "v_writelane")) : rd += r(0)
                if "_dpp" in op or "_sdwa" in op or "row_" in self.mods or "quad_perm" in self.mods: rd += r(0)
            rd += [("exec", 0)]
        else:
            raise ValueError("unknown op " + op)
        self.rd = rd; self.wr = wr
    def is_trans(self): return self.op.startswith(TRANS)
    def is_dpp(self): return "_dpp" in self.op
    def is_vmem(self): return self.kind in ("dma", "vmem_ld", "vmem_st", "vmem_at")

class Label:
    def __init__(self, name): self.name = name
class Raw:
    def __init__(self, text): self.text = text
class Loop:
    def __init__(self, label, body, count): self.label = label; self.body = body; self.count = count
class Alt:
    def __init__(self, bodies): self.bodies = bodies

class K:
    uid = 0
    def __init__(self, name):
        self.name = name
        self.items = []
        self.stack = [self.items]
    @property
    def cur(self): return self.stack[-1]
    def I(self, op, *args, mods="", tag=None, c=None):
        ins = Ins(op, args, mods, tag, c)
        self.cur.append(ins); return ins
    def emit(self, ins): self.cur.append(ins); return ins
    def label(self, name): self.cur.append(Label(name))
    def raw(self, t): self.cur.append(Raw(t))
    def newlabel(self, base="L"):
        K.uid += 1
        return f"{base}_{self.name[:8]}_{K.uid}"
    def wait_tags(self, *tags, lgkm=False):
        ins = Ins("s_waitcnt", []); ins.needtags = set(tags); self.cur.append(ins); return ins
    def wait_all(self, vm=True, lgkm=True):
        t = []
        if vm: t.append("vmcnt(0)")
        if lgkm: t.append("lgkmcnt(0)")
        return self.I("s_waitcnt", " ".join(t))
    def nop(self, n=1):
        while n > 0:
            k = min(n, 16); self.I("s_nop", k - 1); n -= k
    def loop(self, count, ctr, body_fn, init=True):
        lab = self.newlabel("LP")
        if init: self.I("s_mov_b32", s(ctr), count)
        body = []
        self.stack.append(body)
        body_fn()
        self.I("s_sub_u32", s(ctr), s(ctr), 1)
        self.I("s_cmp_lg_u32", s(ctr), 0)
        self.I("s_cbranch_scc1", lab)
        self.stack.pop()
        self.cur.append(Loop(lab, body, count))
    def if_scc(self, skip_op, body_fn):
        lab = self.newlabel("SK")
        self.I(skip_op, lab)
        body = []
        self.stack.append(body); body_fn(); self.stack.pop()
        self.cur.append(Alt([body, []])); self.label(lab)
    def if_else(self, else_op, fa, fb):
        le = self.newlabel("EL"); ld = self.newlabel("EN")
        self.I(else_op, le)
        A = []; self.stack.append(A); fa(); self.I("s_branch", ld); self.stack.pop()
        B = [Label(le)]; self.stack.append(B); fb(); self.stack.pop()
        self.cur.append(Alt([A, B])); self.label(ld)
    def switch(self, sreg, cases):
        ld = self.newlabel("SWE")
        labs = [self.newlabel("SW") for _ in cases]
        for (b, _), l in zip(cases[:-1], labs[:-1]):
            self.I("s_cmp_lt_u32", s(sreg), b); self.I("s_cbranch_scc1", l)
        self.I("s_branch", labs[-1])
        bodies = []
        for i, ((b, fn), l) in enumerate(zip(cases, labs)):
            B = [Label(l)]; self.stack.append(B); fn()
            if i < len(cases) - 1: self.I("s_branch", ld)
            self.stack.pop(); bodies.append(B)
        self.cur.append(Alt(bodies)); self.label(ld)

    def raw_block(self, fn):
        body = []
        self.stack.append(body); fn(); self.stack.pop()
        out = []
        for i, ins in enumerate(body):
            if ins.kind == "dma" and i > 0 and body[i - 1].kind == "salu" and ("m0", 0) in body[i - 1].wr:
                out.append(Raw("  s_nop 0"))
            out.append(Raw("  " + ins.text()))
        self.cur.extend(out)

    def _alts(self, items, acc):
        for it in items:
            if isinstance(it, Loop): self._alts(it.body, acc)
            elif isinstance(it, Alt):
                acc.append(it)
                for b in it.bodies: self._alts(b, acc)
        return acc
    def _trace(self, items, choice, maxit):
        out = []
        for it in items:
            if isinstance(it, Ins): out.append(it)
            elif isinstance(it, Loop):
                n = it.count if it.count <= maxit else maxit
                for _ in range(n): out += self._trace(it.body, choice, maxit)
            elif isinstance(it, Alt):
                b = it.bodies[choice[id(it)]]
                if b and isinstance(b[-1], Ins) and b[-1].op == "s_endpgm": b[-1].tag = "ALTEND"
                out += self._trace(b, choice, maxit)
        return out

    def resolve(self, maxit=None):
        import itertools
        if maxit is None: maxit = getattr(self, "maxit", 4)
        alts = self._alts(self.items, [])
        tot = 1
        for al in alts: tot *= len(al.bodies)
        if tot <= 256:
            combos = itertools.product(*[range(len(al.bodies)) for al in alts])
        else:
            m = max(len(al.bodies) for al in alts)
            combos = [tuple(min(i, len(al.bodies) - 1) for al in alts) for i in range(m)]
        traces = []
        seen = set()
        for cmb in combos:
            choice = {id(al): c for al, c in zip(alts, cmb)}
            tr = self._trace(self.items, choice, maxit)
            for i_, x_ in enumerate(tr):
                if x_.op == "s_endpgm" and x_.tag == "ALTEND":
                    tr = tr[:i_ + 1]; break
            key = tuple(id(x) for x in tr)
            if key in seen: continue
            seen.add(key); traces.append(tr)
        for tr in traces: self._waits(tr)
        for tr in traces: self._hazards(tr)

    def _waits(self, tr):
        vm = []
        lg = []
        smem = False
        def upd(ins, attr, n):
            cur = getattr(ins, attr)
            setattr(ins, attr, n if cur is None else min(cur, n))
        for ins in tr:
            if ins.op == "s_waitcnt" and ins.needtags is None:
                t = ins.args[0]
                m = re.search(r"vmcnt\((\d+)\)", t)
                if m:
                    n = int(m.group(1)); vm = vm[len(vm) - n:] if n < len(vm) and n > 0 else ([] if n == 0 else vm)
                m = re.search(r"lgkmcnt\((\d+)\)", t)
                if m:
                    n = int(m.group(1))
                    if n == 0: lg = []; smem = False
                    elif n < len(lg): lg = lg[len(lg) - n:]
                continue
            if ins.needtags is not None:
                idx = -1
                for i, (o, _) in enumerate(vm):
                    if o.tag in ins.needtags: idx = i
                n = len(vm) - 1 - idx if idx >= 0 else None
                if n is not None:
                    n = min(n, 63); upd(ins, "wait_vm", n); vm = vm[len(vm) - n:] if n > 0 else []
                continue
            touched = set(ins.rd) | set(ins.wr)
            idx = -1
            for i, (o, regs) in enumerate(vm):
                if regs and (regs & touched): idx = i
            if idx >= 0:
                n = min(len(vm) - 1 - idx, 63); upd(ins, "wait_vm", n); vm = vm[len(vm) - n:] if n > 0 else []
            idx = -1
            has_smem = any(o.kind == "smem" for o, _ in lg)
            for i, (o, regs) in enumerate(lg):
                if regs and (regs & touched): idx = i
            if idx >= 0:
                n = 0 if has_smem else min(len(lg) - 1 - idx, 15)
                upd(ins, "wait_lgkm", n); lg = lg[len(lg) - n:] if n > 0 else []
            if ins.op == "s_barrier":
                idx2 = -1
                for i, (o, _) in enumerate(lg):
                    if o.kind == "ds_st": idx2 = i
                if idx2 >= 0:
                    n = 0 if any(o.kind == "smem" for o, _ in lg) else min(len(lg) - 1 - idx2, 15)
                    upd(ins, "wait_lgkm", n); lg = lg[len(lg) - n:] if n > 0 else []
            if ins.is_vmem(): vm.append((ins, set(ins.wr)))
            elif ins.kind in ("ds_ld", "ds_st", "smem"): lg.append((ins, set(ins.wr)))
            if len(vm) > 63: vm = vm[-63:]
            if len(lg) > 15 and not any(o.kind == "smem" for o, _ in lg): lg = lg[-15:]

    def _hazards(self, tr):
        hist = []
        def states(x):
            n = x.nops
            if x.op == "s_nop": n += int(x.args[0]) + 1
            elif x.needtags is not None and x.wait_vm is None: n += 0
            else: n += 1
            return n
        for pos, ins in enumerate(tr):
            need = 0
            rd = set(ins.rd); wr = set(ins.wr)
            rdv = {x for x in rd if x[0] in "va"}; wrv = {x for x in wr if x[0] in "va"}
            rds = {x for x in rd if x[0] == "s" or x[0] in ("vcc",)}
            dist = 0
            for j in range(pos - 1, max(-1, pos - 24), -1):
                p = tr[j]
                pw = set(p.wr); pr = set(p.rd)
                req = 0
                if p.kind == "valu":
                    pwv = {x for x in pw if x[0] in "va"}
                    pws = {x for x in pw if x[0] == "s" or x[0] == "vcc"}
                    if ins.kind == "mfma" and (pwv & rdv): req = max(req, 2)
                    if ins.kind == "valu":
                        if p.is_trans() and (pwv & (rdv | wrv)) : req = max(req, 1)
                        if ins.is_dpp() and (pwv & rdv): req = max(req, 2)
                        if ins.op.startswith("v_permlane") and (pwv & rdv): req = max(req, 2)
                        if ins.op.startswith(("v_readlane", "v_readfirstlane")) and (pwv & rdv): req = max(req, 1)
                        if pws & rds: req = max(req, 2)
                        if ("_sdwa" in p.op or "op_sel" in p.mods) and (pwv & (rdv | wrv)): req = max(req, 1)
                        if ("exec", 0) in pw and ins.is_dpp(): req = max(req, 5)
                        if ("exec", 0) in pw and ins.op.startswith(("v_readlane", "v_readfirstlane", "v_permlane")): req = max(req, 4)
                    if ins.kind == "mfma" and ("exec", 0) in pw: req = max(req, 4)
                    if ins.is_vmem() and (pws & rds): req = max(req, 5)
                    if ins.kind == "salu" and (pws & rds): req = max(req, 4)
                    if ins.kind == "branch" and (pws & rds): req = max(req, 5)
                if p.kind == "mfma":
                    P = p.passes
                    d = {x for x in pw}
                    if ins.kind == "mfma":
                        cA = set(regs_of(str(ins.args[1]))) | set(regs_of(str(ins.args[2])))
                        cC = set(regs_of(str(ins.args[3])))
                        if d & cA: req = max(req, {2: 5, 4: 8, 8: 12, 16: 20}[P])
                        if d & cC:
                            if not (cC == d and ins.passes == P): req = max(req, {2: 4, 4: 6, 8: 10, 16: 18}[P])
                        if (d & wrv) and not (d & cC): req = max(req, {2: 5, 4: 8, 8: 12, 16: 20}[P])
                    else:
                        if d & (rdv | wrv): req = max(req, {2: 5, 4: 8, 8: 12, 16: 20}[P])
                        pc = set(regs_of(str(p.args[3])))
                        if ins.kind == "valu" and (pc & wrv): req = max(req, {2: 1, 4: 3, 8: 7, 16: 15}[P])
                if p.kind in ("vmem_st", "vmem_at") and ("x4" in p.op or "x3" in p.op):
                    data = set(regs_of(str(p.args[0]))) if p.op.startswith("buffer") else set(regs_of(str(p.args[1])))
                    if (data & wrv): req = max(req, 2 if ins.kind == "valu" else 1)
                if p.kind == "salu" and ("m0", 0) in pw and ins.kind == "dma": req = max(req, 1)
                if req > dist: need = max(need, req - dist)
                dist += states(p)
                if dist >= 22: break
            if need > ins.nops: ins.nops = need

    def render(self, items=None, ind="  "):
        out = []
        for it in (self.items if items is None else items):
            if isinstance(it, Ins):
                w = []
                if it.wait_vm is not None: w.append(f"vmcnt({it.wait_vm})")
                if it.wait_lgkm is not None: w.append(f"lgkmcnt({it.wait_lgkm})")
                if w: out.append(ind + "s_waitcnt " + " ".join(w))
                n = it.nops
                while n > 0:
                    k = min(n, 16); out.append(ind + f"s_nop {k-1}"); n -= k
                if it.needtags is None: out.append(ind + it.text())
            elif isinstance(it, Label): out.append(it.name + ":")
            elif isinstance(it, Raw): out.append(it.text)
            elif isinstance(it, Loop):
                out.append(it.label + ":"); out += self.render(it.body, ind)
            elif isinstance(it, Alt):
                for b in it.bodies: out += self.render(b, ind)
        return out

def kernel_text(k, nvgpr, nagpr=0, nsgpr=96):
    k.resolve()
    t = [f".globl {k.name}", ".p2align 8", f".type {k.name},@function", f"{k.name}:"]
    t += k.render()
    return "\n".join(t) + "\n"

def descriptor(name, nvgpr, nagpr=0, nsgpr=102, wg_y=False):
    acc = (nvgpr + 3) // 4 * 4
    tot = acc + nagpr if nagpr else nvgpr
    return f""".amdhsa_kernel {name}
  .amdhsa_next_free_vgpr {tot}
  .amdhsa_next_free_sgpr {nsgpr}
  .amdhsa_accum_offset {acc}
  .amdhsa_group_segment_fixed_size 0
  .amdhsa_kernarg_size 72
  .amdhsa_user_sgpr_count 2
  .amdhsa_user_sgpr_kernarg_segment_ptr 1
  .amdhsa_system_sgpr_workgroup_id_x 1
  .amdhsa_float_denorm_mode_32 3
.end_amdhsa_kernel
"""
```

```python
from asm import *

S = 2048; D = 576; H = 32; DH = 18; F = 4608
RT = 64
KS = 36
def _al(x, a=4096): return (x + a - 1) // a * a
off = {}
_cur = 0
def _alloc(name, n):
    global _cur
    off[name] = _cur
    _cur = _al(_cur + n)
XF_BYTES = RT * KS * 1024
_alloc("XF", XF_BYTES)
_alloc("XN", XF_BYTES)
_alloc("WQKV", 56 * KS * 1024)
_alloc("WO", 18 * KS * 1024)
_alloc("W1", 144 * KS * 1024)
_alloc("W2", 18 * 288 * 1024)
_alloc("QM", H * RT * 1024)
_alloc("QE", H * S * 4)
KV_CHUNK = 19456
KV_HEAD = 8 * KV_CHUNK
_alloc("KV", H * KV_HEAD + 65536)
_alloc("OM", XF_BYTES)
_alloc("ST", RT * 9 * 64 * 8)
_alloc("HF", RT * 288 * 1024)
_alloc("PART", 5 * XF_BYTES)
WS_USED = _cur
WS_SIZE = 268435456
LOG2E = 1.4426950408889634
import struct
def f2u(x): return struct.unpack("<I", struct.pack("<f", x))[0]
def hexf(x): return hex(f2u(x))

SRD_WS = 8
SRD_A = 12
def load_ptr(k, dst, slot): k.I("s_load_dwordx2", s(dst, 2), s(0, 2), slot * 8)
def make_srd(k, srd, ptr, nbytes):
    k.I("s_mov_b32", s(srd), s(ptr))
    k.I("s_and_b32", s(srd + 1), s(ptr + 1), 0xffff)
    k.I("s_mov_b32", s(srd + 2), hex(nbytes))
    k.I("s_mov_b32", s(srd + 3), "0x20000")
def exit_if_ge(k, sreg, n):
    k.I("s_cmp_ge_u32", s(sreg), n)
    k.I("s_cbranch_scc1", k.endlabel)
def begin(name):
    k = K(name)
    k.endlabel = k.newlabel("END")
    return k
def finish(k):
    k.label(k.endlabel)
    k.I("s_endpgm")
    return k

import os
STAMP = int(os.environ.get("STAMP", "0"))
STAMP_WG = int(os.environ.get("STAMP_WG", "0"))
def stamp(k, i):
    if not STAMP: return
    k.I("s_memtime", s(64 + 2 * i, 2))
    if i == 0: k.I("s_memrealtime", s(96, 2))
    k.I("s_waitcnt", "lgkmcnt(0)")
def stamp_out(k, n, tid0=0, area=0):
    if not STAMP: return
    k.I("v_readfirstlane_b32", s(60), v(0))
    k.I("s_cmp_lg_u32", s(60), tid0)
    lab = k.newlabel("NS")
    k.I("s_cbranch_scc1", lab)
    k.I("s_lshl_b32", s(61), s(2), 7)
    k.I("s_add_u32", s(61), s(61), WS_USED + area * 32768)
    k.I("v_mov_b32", v(1), 0)
    k.I("s_memrealtime", s(98, 2))
    k.I("s_waitcnt", "lgkmcnt(0)")
    k.I("v_mov_b32", v(2), s(96))
    k.I("buffer_store_dword", v(2), v(1), s(SRD_WS, 4), s(61), mods="offen offset:120")
    k.I("v_mov_b32", v(2), s(98))
    k.I("buffer_store_dword", v(2), v(1), s(SRD_WS, 4), s(61), mods="offen offset:124")
    for i in range(n):
        k.I("v_mov_b32", v(2), s(64 + 2 * i))
        k.I("buffer_store_dword", v(2), v(1), s(SRD_WS, 4), s(61), mods=f"offen offset:{4 * i}")
    k.label(lab)
```

```python
from common import *
from k_gemm1 import mfma, wave_setup, offm

def make_attn(name):
    k = begin(name)
    exit_if_ge(k, 2, 256)
    load_ptr(k, 4, 8)
    vL, vL16, vK, vKe, vV, vT, vH, vN = 1, 2, 3, 4, 5, 6, 7, 8
    QM_, QE_ = 12, 16
    SS = 20
    OO = 52
    PP = 68
    KM = 76
    KE = 84
    VV = 92
    TM = 108
    wave_setup(k, vL, 20)
    k.I("v_lshlrev_b32", v(vL16), 4, v(vL))
    k.I("v_lshrrev_b32", v(vH), 5, v(vL))
    k.I("v_and_b32", v(vN), 31, v(vL))
    k.I("s_and_b32", s(21), s(2), 7)
    k.I("s_lshr_b32", s(22), s(2), 3)
    k.I("s_lshl_b32", s(23), s(21), 2)
    k.I("s_and_b32", s(24), s(22), 3)
    k.I("s_add_u32", s(23), s(23), s(24))
    k.I("s_lshr_b32", s(24), s(22), 2)
    k.I("s_lshl_b32", s(25), s(24), 3)
    k.I("s_add_u32", s(25), s(25), s(20))
    k.wait_all(vm=False)
    make_srd(k, SRD_WS, 4, WS_SIZE)
    stamp(k, 0)
    def loader():
        k.I("s_mul_i32", s(30), s(23), KV_HEAD)
        k.I("s_add_u32", s(30), s(30), off["KV"])
        k.I("s_mov_b32", s(31), 0)
        def chunk():
            for g0 in range(0, 19, 4):
                k.I("s_mov_b32", "m0", s(31))
                n = min(4, 19 - g0)
                for j in range(n):
                    k.I("buffer_load_dwordx4", v(vL16), s(SRD_WS, 4), s(30), mods=offm(j * 1024, "lds"))
                k.I("s_add_u32", s(30), s(30), n * 1024)
                k.I("s_add_u32", s(31), s(31), n * 1024)
        chunk(); chunk(); chunk()
        for c in range(8):
            k.I("s_waitcnt", f"vmcnt({19 * (min(c + 2, 7) - c)})")
            k.I("s_barrier")
            if c + 3 <= 7: chunk()
        k.I("s_barrier")
        k.I("s_endpgm")
    k.I("s_cmp_lt_u32", s(20), 8)
    k.if_scc("s_cbranch_scc1", loader)
    k.I("s_lshl_b32", s(26), s(23), 6)
    k.I("s_add_u32", s(26), s(26), s(25))
    k.I("s_lshl_b32", s(26), s(26), 10)
    k.I("s_add_u32", s(26), s(26), off["QM"])
    k.I("buffer_load_dwordx4", v(QM_, 4), v(vL16), s(SRD_WS, 4), s(26), mods="offen")
    k.I("s_lshl_b32", s(27), s(23), 13)
    k.I("s_lshl_b32", s(28), s(25), 7)
    k.I("s_add_u32", s(27), s(27), s(28))
    k.I("s_add_u32", s(27), s(27), off["QE"])
    k.I("v_lshlrev_b32", v(vT), 2, v(vN))
    k.I("buffer_load_dword", v(QE_), v(vT), s(SRD_WS, 4), s(27), mods="offen")
    k.I("v_mov_b32", v(vK), v(vL16))
    k.I("v_lshlrev_b32", v(vKe), 2, v(vN))
    k.I("v_add_u32", v(vKe), 8192, v(vKe))
    k.I("v_subrev_u32", v(vT), 16, v(vN))
    k.I("v_cmp_gt_u32", "vcc", 20, v(vN))
    k.I("v_cndmask_b32", v(vT), v(vT), v(vN), "vcc")
    k.I("v_lshlrev_b32", v(vT), 4, v(vT))
    k.I("v_mul_u32_u24", v(vV), 320, v(vH))
    k.I("v_add_u32", v(vV), v(vV), v(vT))
    k.I("v_add_u32", v(vV), 9216, v(vV))
    for i in range(1, 4):
        k.I("v_mov_b32", v(QE_ + i), 0)
        k.I("v_mov_b32", v(KE + i), 0)
        k.I("v_mov_b32", v(KE + 4 + i), 0)
    for i in range(16): k.I("v_mov_b32", v(OO + i), 0)
    for i in range(4):
        k.I("v_mov_b32", v(PP + 4 + i), 0)
        k.I("v_mov_b32", v(VV + 8 + 4 + i), 0)
    k.I("v_cmp_gt_u32", "vcc", 32, v(vL))
    k.I("v_cndmask_b32", v(QE_), 0, v(QE_), "vcc")
    def ldK(t):
        b = t & 1
        c, tt = divmod(t, 8)
        k.I("ds_read_b128", v(KM + 4 * b, 4), v(vK), mods=f"offset:{c * KV_CHUNK + tt * 1024}")
        k.I("ds_read_b32", v(KE + 4 * b), v(vKe), mods=f"offset:{c * KV_CHUNK + tt * 128}")
    def ldV(t, u):
        b = t & 1
        c, tt = divmod(t, 8)
        k.I("ds_read_b128", v(VV + 8 * b + 4 * u, 4), v(vV), mods=f"offset:{c * KV_CHUNK + (2 * tt + u) * 640}")
    def qk(t, which):
        b = t & 1
        if which == 0: mfma(k, SS + 16 * b, v(KM + 4 * b, 4), v(QM_, 4), True)
        else: mfma(k, SS + 16 * b, v(KE + 4 * b, 4), v(QE_, 4))
    stamp(k, 1)
    k.I("s_barrier")
    stamp(k, 2)
    ldK(0); ldV(0, 0); ldK(1)
    qk(0, 0); qk(0, 1)
    def tile(t):
        b = t & 1
        Sb = SS + 16 * b
        ex = lambda i: k.I("v_exp_f32", v(Sb + i), v(Sb + i))
        cv = lambda i: k.I("v_cvt_pk_bf16_f32", v(PP + i), v(Sb + 2 * i), v(Sb + 2 * i + 1))
        if t == 6: k.I("s_barrier")
        qk(t + 1, 0)
        ldV(t, 1)
        for i in range(0, 4): ex(i)
        mfma(k, OO, v(VV + 8 * (1 - b) + 4, 4), v(PP + 4, 4))
        ldK(t + 2)
        for i in range(4, 8): ex(i)
        cv(0); cv(1)
        qk(t + 1, 1)
        ldV(t + 1, 0)
        cv(2); cv(3)
        for i in range(8, 12): ex(i)
        mfma(k, OO, v(VV + 8 * b, 4), v(PP, 4))
        for i in range(12, 16): ex(i)
        for i in range(4, 8): cv(i)
    def body():
        for t in range(8): tile(t)
        k.I("v_add_u32", v(vK), KV_CHUNK, v(vK))
        k.I("v_add_u32", v(vKe), KV_CHUNK, v(vKe))
        k.I("v_add_u32", v(vV), KV_CHUNK, v(vV))
    k.maxit = 3
    k.loop(8, 41, body)
    mfma(k, OO, v(VV + 8 + 4, 4), v(PP + 4, 4))
    stamp(k, 3)
    vLs, vInv = TM, TM + 1
    def finish_rows():
        k.I("v_mov_b32", v(vLs), v(OO + 10))
        k.I("v_mov_b32", v(vInv), v(OO + 10))
        k.I("v_permlane32_swap_b32", v(vLs), v(vInv))
    finish_rows()
    k.I("v_cmp_le_f32", "vcc", hexf(2.0 ** -40), v(vLs))
    k.I("v_cmp_ge_f32", s(44, 2), hexf(2.0 ** 60) if False else v(vLs), v(vLs)) if False else None
    k.I("s_mov_b32", s(46), hexf(2.0 ** 60))
    k.I("v_cmp_le_f32", s(44, 2), v(vLs), s(46))
    k.I("s_and_b64", "vcc", "vcc", s(44, 2))
    k.I("v_max3_f32", v(TM + 2), "abs(" + v(OO) + ")", "abs(" + v(OO + 1) + ")", "abs(" + v(OO + 2) + ")")
    k.I("v_max3_f32", v(TM + 2), "abs(" + v(OO + 3) + ")", "abs(" + v(OO + 4) + ")", v(TM + 2))
    k.I("v_max3_f32", v(TM + 2), "abs(" + v(OO + 5) + ")", "abs(" + v(OO + 6) + ")", v(TM + 2))
    k.I("v_max3_f32", v(TM + 2), "abs(" + v(OO + 7) + ")", v(TM + 2), v(TM + 2))
    k.I("v_max3_f32", v(TM + 2), "abs(" + v(OO + 8) + ")", "abs(" + v(OO + 9) + ")", v(TM + 2))
    k.I("s_mov_b32", s(46), hexf(2.0 ** 120))
    k.I("v_cmp_le_f32", s(44, 2), v(TM + 2), s(46))
    k.I("s_and_b64", "vcc", "vcc", s(44, 2))
    k.I("s_cmp_eq_u64", "vcc", -1)
    def slow():
        vM, vMn, vAl = TM + 3, TM + 4, TM + 5
        k.I("v_mov_b32", v(vM), "0xff800000")
        for i in range(16): k.I("v_mov_b32", v(OO + i), 0)
        k.I("v_subrev_u32", v(vK), 8 * KV_CHUNK, v(vK))
        k.I("v_subrev_u32", v(vKe), 8 * KV_CHUNK, v(vKe))
        k.I("v_subrev_u32", v(vV), 8 * KV_CHUNK, v(vV))
        def sbody():
            for t in range(8):
                ldK(2 * (t // 2) * 0 + t) if False else None
                k.I("ds_read_b128", v(KM, 4), v(vK), mods=f"offset:{t * 1024}")
                k.I("ds_read_b32", v(KE), v(vKe), mods=f"offset:{t * 128}")
                for u in range(2):
                    k.I("ds_read_b128", v(VV + 4 * u, 4), v(vV), mods=f"offset:{(2 * t + u) * 640}")
                mfma(k, SS, v(KM, 4), v(QM_, 4), True)
                mfma(k, SS, v(KE, 4), v(QE_, 4))
                k.I("v_max3_f32", v(vMn), v(SS), v(SS + 1), v(vM))
                for i in range(2, 16, 2): k.I("v_max3_f32", v(vMn), v(SS + i), v(SS + i + 1), v(vMn))
                k.I("v_mov_b32", v(vAl), v(vMn))
                k.I("v_permlane32_swap_b32", v(vAl), v(vMn))
                k.I("v_max_f32", v(vMn), v(vMn), v(vAl))
                k.I("v_sub_f32", v(vAl), v(vM), v(vMn))
                k.I("v_exp_f32", v(vAl), v(vAl))
                k.I("v_mov_b32", v(vM), v(vMn))
                for i in range(16):
                    k.I("v_sub_f32", v(SS + i), v(SS + i), v(vMn))
                    k.I("v_exp_f32", v(SS + i), v(SS + i))
                    k.I("v_mul_f32", v(OO + i), v(OO + i), v(vAl))
                for i in range(8): k.I("v_cvt_pk_bf16_f32", v(PP + i), v(SS + 2 * i), v(SS + 2 * i + 1))
                mfma(k, OO, v(VV, 4), v(PP, 4))
                mfma(k, OO, v(VV + 4, 4), v(PP + 4, 4))
            k.I("v_add_u32", v(vK), KV_CHUNK, v(vK))
            k.I("v_add_u32", v(vKe), KV_CHUNK, v(vKe))
            k.I("v_add_u32", v(vV), KV_CHUNK, v(vV))
        k.loop(8, 41, sbody)
        finish_rows()
    k.if_scc("s_cbranch_scc1", slow)
    k.I("v_rcp_f32", v(vInv), v(vLs))
    for i in range(10): k.I("v_mul_f32", v(OO + i), v(OO + i), v(vInv))
    for i in range(5): k.I("v_cvt_pk_bf16_f32", v(PP + i), v(OO + 2 * i), v(OO + 2 * i + 1))
    k.I("s_mul_i32", s(26), s(25), 36)
    k.I("s_add_u32", s(27), s(26), s(23))
    k.I("s_lshl_b32", s(27), s(27), 10)
    k.I("s_add_u32", s(27), s(27), off["OM"])
    k.I("buffer_store_dwordx4", v(PP, 4), v(vL16), s(SRD_WS, 4), s(27), mods="offen")
    k.I("s_lshr_b32", s(27), s(23), 3)
    k.I("s_add_u32", s(27), s(27), s(26))
    k.I("s_add_u32", s(27), s(27), 32)
    k.I("s_lshl_b32", s(27), s(27), 10)
    k.I("s_bfe_u32", s(28), s(23), 0x10002)
    k.I("s_lshl_b32", s(28), s(28), 9)
    k.I("s_add_u32", s(27), s(27), s(28))
    k.I("s_and_b32", s(28), s(23), 3)
    k.I("s_lshl_b32", s(28), s(28), 2)
    k.I("s_add_u32", s(27), s(27), s(28))
    k.I("s_add_u32", s(27), s(27), off["OM"])
    k.I("v_lshlrev_b32", v(vT), 4, v(vN))
    k.I("s_mov_b64", "exec", "0xffffffff")
    k.I("buffer_store_dword", v(PP + 4), v(vT), s(SRD_WS, 4), s(27), mods="offen")
    k.I("s_mov_b64", "exec", -1)
    stamp(k, 4)
    k.wait_all()
    stamp(k, 5)
    stamp_out(k, 6)
    return finish(k), dict(nv=120, na=0)
```

```python
from common import *
import os
from k_gemm1 import mfma, wave_setup, offm, dma

def interleave(k, main, fill, start=0, end=None):
    n = len(main)
    if end is None: end = n
    slots = end - start
    pos = 0
    for g in range(n):
        for f in main[g]: f()
        if start <= g < end:
            tgt = (len(fill) * (g - start + 1) + slots - 1) // slots
            while pos < min(tgt, len(fill)):
                fill[pos](); pos += 1
    while pos < len(fill):
        fill[pos](); pos += 1

def make_ffn1(name):
    from k_t2 import role_setup
    k = begin(name)
    exit_if_ge(k, 2, 256)
    load_ptr(k, 4, 8)
    vL, vL16, vA, vR, vM, vT = 1, 2, 3, 4, 6, 8
    XB, ACC, FR, TM, P = 16, 160, 192, 228, 244
    PF = 6; NFR = 9; GW = 3
    XLA = 12
    TILE = 36 * 1024
    NSLOT = 4
    role_setup(k)
    k.I("s_and_b32", s(21), s(2), 7)
    k.I("s_lshr_b32", s(22), s(2), 3)
    k.I("s_and_b32", s(23), s(21), 3)
    k.I("s_lshl_b32", s(23), s(23), 2)
    k.I("s_and_b32", s(24), s(22), 3)
    k.I("s_add_u32", s(23), s(23), s(24))
    k.I("s_lshr_b32", s(24), s(21), 2)
    k.I("s_lshl_b32", s(24), s(24), 3)
    k.I("s_lshr_b32", s(25), s(22), 2)
    k.I("s_add_u32", s(24), s(24), s(25))
    k.I("s_lshl_b32", s(25), s(23), 2)
    k.I("s_add_u32", s(25), s(25), s(20))
    k.wait_all(vm=False)
    make_srd(k, SRD_WS, 4, WS_SIZE)
    make_srd(k, SRD_A, 4, WS_SIZE)
    stamp(k, 0)
    def loader():
        k.I("s_mul_i32", s(30), s(24), 9 * TILE)
        k.I("s_mul_i32", s(31), s(20), 9216)
        k.I("s_add_u32", s(30), s(30), s(31))
        k.I("s_add_u32", s(30), s(30), off["W1"])
        k.I("s_mov_b32", s(32), s(31))
        k.I("s_mov_b32", s(33), 0)
        def issue():
            for g0 in (0, 3, 6):
                k.I("s_add_u32", s(34), s(32), g0 * 1024)
                k.I("s_mov_b32", "m0", s(34))
                k.I("s_add_u32", s(35), s(30), g0 * 1024)
                for j in range(3):
                    k.I("buffer_load_dwordx4", v(vL16), s(SRD_A, 4), s(35), mods=offm(j * 1024, "lds"))
            k.I("s_add_u32", s(30), s(30), TILE)
            k.I("s_add_u32", s(32), s(32), TILE)
            k.I("s_sub_u32", s(34), s(32), NSLOT * TILE)
            k.I("s_cmp_ge_u32", s(32), NSLOT * TILE)
            k.I("s_cselect_b32", s(32), s(34), s(32))
            k.I("s_add_u32", s(33), s(33), 1)
            k.I("s_cmp_ge_u32", s(33), 9)
            k.I("s_cselect_b32", s(SRD_A + 2), 0, s(SRD_A + 2))
        issue()
        k.I("s_waitcnt", "vmcnt(0)")
        k.I("s_barrier")
        issue(); issue()
        def lb():
            k.I("s_waitcnt", "vmcnt(9)")
            k.I("s_barrier")
            issue()
        k.loop(9, 41, lb)
        k.I("s_endpgm")
    k.I("s_cmp_eq_u32", s(19), 0)
    k.if_scc("s_cbranch_scc1", loader)
    k.I("s_setprio", 1)
    k.I("s_mul_i32", s(26), s(25), 9 * 512)
    k.I("s_add_u32", s(26), s(26), off["ST"])
    k.I("v_lshlrev_b32", v(vT), 3, v(vL))
    for c in range(8):
        k.I("buffer_load_dwordx2", v(TM + 2 * c, 2), v(vT), s(SRD_WS, 4), s(26), mods=offm(c * 512))
    k.I("s_add_u32", s(27), s(26), 4096)
    k.I("buffer_load_dwordx2", v(P, 2), v(vT), s(SRD_WS, 4), s(27), mods="offen")
    k.I("s_mul_i32", s(36), s(25), 36 * 1024)
    k.I("s_add_u32", s(36), s(36), off["XF"])
    def ldx(st):
        k.I("buffer_load_dwordx4", v(XB + 4 * st, 4), v(vL16), s(SRD_WS, 4), s(36), mods=offm((st & 3) * 1024))
        if st & 3 == 3: k.I("s_add_u32", s(36), s(36), 4096)
    for st in range(XLA): ldx(st)
    stamp(k, 1)
    k.I("s_mul_i32", s(38), s(25), 288 * 1024)
    k.I("s_mul_i32", s(39), s(24), 18 * 1024)
    k.I("s_add_u32", s(38), s(38), s(39))
    k.I("s_add_u32", s(38), s(38), off["HF"])
    vS, vQ = vR, vR + 1
    k.I("v_add_f32", v(vS), v(TM), v(TM + 2))
    k.I("v_add_f32", v(vQ), v(TM + 1), v(TM + 3))
    for c in range(2, 8):
        k.I("v_add_f32", v(vS), v(vS), v(TM + 2 * c))
        k.I("v_add_f32", v(vQ), v(vQ), v(TM + 2 * c + 1))
    k.I("v_add_f32", v(vS), v(vS), v(P))
    k.I("v_add_f32", v(vQ), v(vQ), v(P + 1))
    for r in (vS, vQ):
        k.I("v_mov_b32", v(vT), v(r))
        k.I("v_permlane32_swap_b32", v(vT), v(r))
        k.I("v_add_f32", v(r), v(r), v(vT))
    k.I("v_mul_f32", v(vS), hexf(1.0 / D), v(vS))
    k.I("v_mul_f32", v(vQ), hexf(1.0 / D), v(vQ))
    k.I("v_fma_f32", v(vQ), "-" + v(vS), v(vS), v(vQ))
    k.I("v_max_f32", v(vQ), 0, v(vQ))
    k.I("v_add_f32", v(vQ), hexf(1e-5), v(vQ))
    k.I("v_rsq_f32", v(vQ), v(vQ))
    k.I("v_mul_f32", v(vQ), hexf(-LOG2E), v(vQ))
    k.I("v_mul_f32", v(vM), v(vS), v(vQ))
    k.I("v_sub_f32", v(vM), 0, v(vM))
    k.I("v_mov_b32", v(vR), v(vQ))
    def norm(st):
        x = XB + 4 * st
        for i in range(4):
            k.I("v_lshlrev_b32", v(TM + 2 * i), 16, v(x + i))
            k.I("v_and_b32", v(TM + 2 * i + 1), "0xffff0000", v(x + i))
        for i in range(4):
            k.I("v_pk_fma_f32", v(TM + 2 * i, 2), v(TM + 2 * i, 2), v(vR, 2), v(vM, 2), mods="op_sel_hi:[1,0,0]")
        for i in range(4):
            k.I("v_cvt_pk_bf16_f32", v(x + i), v(TM + 2 * i), v(TM + 2 * i + 1))
    k.I("s_mov_b32", s(40), 0)
    def rd(st_abs):
        fr = FR + 4 * (st_abs % NFR)
        k.I("ds_read_b128", v(fr, 4), v(vA), mods=f"offset:{(st_abs % KS) * 1024}")
    def next_slot():
        k.I("s_add_u32", s(40), s(40), TILE)
        k.I("s_cmp_ge_u32", s(40), NSLOT * TILE)
        k.I("s_cselect_b32", s(40), 0, s(40))
    def epi_ops(acc):
        ops = []
        for i in range(16 + 3):
            if i < 16: ops.append(lambda i=i: k.I("v_exp_f32", v(TM + i), v(acc + i)))
            if 0 <= i - 1 < 16: ops.append(lambda i=i - 1: k.I("v_add_f32", v(TM + i), 1.0, v(TM + i)))
            if 0 <= i - 2 < 16: ops.append(lambda i=i - 2: k.I("v_rcp_f32", v(TM + i), v(TM + i)))
            if 0 <= i - 3 < 16:
                j = i - 3
                ops.append(lambda j=j: k.I("v_mul_f32", v(TM + j), v(acc + j), v(TM + j)))
                if j & 1: ops.append(lambda j=j: k.I("v_cvt_pk_bf16_f32", v(P + j // 2), v(TM + j - 1), v(TM + j)))
        return ops
    def cost(f):
        return 1
    def stores():
        k.I("buffer_store_dwordx4", v(P, 4), v(vL16), s(SRD_WS, 4), s(38), mods="offen")
        k.I("buffer_store_dwordx4", v(P + 4, 4), v(vL16), s(SRD_WS, 4), s(38), mods="offen offset:1024")
        k.I("s_add_u32", s(38), s(38), 2048)
    def tile(par, first):
        acc = ACC + 16 * par
        fill = [] if first else epi_ops(ACC + 16 * (1 - par))
        ops = []
        if fill:
            probe = K("p")
            costs = []
            for f in fill:
                n0 = len(k.cur); f(); ins = k.cur.pop(); costs.append(8 if ins.is_trans() else 4)
            tot = sum(costs); G = 33
        pos = 0; acc_c = 0
        for st in range(KS):
            if first:
                if st + XLA < KS: ldx(st + XLA)
                norm(st)
            nx = st + PF
            if nx == KS:
                k.I("s_barrier")
                k.I("v_add_u32", v(vA), s(40), v(vL16))
            rd(nx)
            if st % GW == 0 and not first:
                k.I("s_waitcnt", f"lgkmcnt({PF - GW + 1})")
            mfma(k, acc, v(FR + 4 * (st % NFR), 4), v(XB + 4 * st, 4), st == 0)
            if st == 20: next_slot()
            if fill and st >= 2:
                tgt = tot * (st - 1) / G
                while pos < len(fill) and acc_c + costs[pos] / 2 <= tgt:
                    fill[pos](); acc_c += costs[pos]; pos += 1
                if st == KS - 1:
                    while pos < len(fill): fill[pos](); pos += 1
                    stores()
    k.I("v_mov_b32", v(vA), v(vL16))
    k.I("s_barrier")
    stamp(k, 2)
    for st in range(PF): rd(st)
    tile(0, True)
    stamp(k, 3)
    def body():
        tile(1, False)
        tile(0, False)
    k.loop(4, 41, body)
    stamp(k, 4)
    for f in epi_ops(ACC): f()
    stores()
    for i in range(5, 9): stamp(k, i)
    if STAMP: k.wait_all()
    stamp(k, 9)
    stamp_out(k, 10)
    return finish(k), dict(nv=252, na=0)

def make_ffn2(name):
    from k_t2 import T2, role_setup
    k = begin(name)
    exit_if_ge(k, 2, 240)
    load_ptr(k, 4, 8)
    vL, vL16 = 1, 2
    ACC, FR, P = 16, 112, 168
    NT = 6
    role_setup(k)
    k.I("s_and_b32", s(21), s(2), 7)
    k.I("s_lshr_b32", s(22), s(2), 3)
    k.I("s_mul_i32", s(23), s(22), 21846)
    k.I("s_lshr_b32", s(23), s(23), 16)
    k.I("s_mul_i32", s(24), s(23), 3)
    k.I("s_sub_u32", s(24), s(22), s(24))
    k.I("s_mul_i32", s(21), s(21), 10)
    k.I("s_add_u32", s(23), s(23), s(21))
    k.I("s_lshr_b32", s(26), s(23), 4)
    k.I("s_and_b32", s(23), s(23), 15)
    k.I("s_lshl_b32", s(25), s(23), 2)
    k.I("s_add_u32", s(25), s(25), s(20))
    k.I("s_mul_i32", s(27), s(26), 58)
    k.I("s_cmp_eq_u32", s(26), 4)
    k.I("s_cselect_b32", s(28), 28, 29)
    k.wait_all(vm=False)
    make_srd(k, SRD_WS, 4, WS_SIZE)
    make_srd(k, SRD_A, 4, WS_SIZE)
    k.I("s_mul_i32", s(30), s(24), 288 * 6144)
    k.I("s_mul_i32", s(31), s(27), 6144)
    k.I("s_add_u32", s(30), s(30), s(31))
    k.I("s_add_u32", s(30), s(30), off["W2"])
    k.I("s_mul_i32", s(32), s(25), 288)
    k.I("s_add_u32", s(32), s(32), s(27))
    k.I("s_lshl_b32", s(32), s(32), 10)
    k.I("s_add_u32", s(32), s(32), off["HF"])
    FIX = int(os.environ.get("FFN2_FIX", "0"))
    if FIX & 1:
        k.I("s_lshl_b32", s(32), s(20), 18); k.I("s_add_u32", s(32), s(32), off["HF"])
    if FIX & 2:
        k.I("s_mov_b32", s(30), off["W2"])
    g = T2(k, NT, int(os.environ.get("FFN2_NB", "7")), ACC, FR)
    stamp(k, 0)
    k.I("s_cmp_eq_u32", s(19), 0)
    k.if_scc("s_cbranch_scc1", g.loader)
    k.I("s_setprio", 1)
    stamp(k, 1)
    stamp(k, 2)
    g.compute(False)
    stamp(k, 3)
    k.I("s_mul_i32", s(43), s(26), XF_BYTES)
    k.I("s_mul_i32", s(44), s(25), 36 * 1024)
    k.I("s_add_u32", s(43), s(43), s(44))
    k.I("s_mul_i32", s(44), s(24), 12 * 1024)
    k.I("s_add_u32", s(43), s(43), s(44))
    k.I("s_add_u32", s(43), s(43), off["PART"])
    for t in range(NT):
        pb = P + 8 * (t & 1)
        for i in range(8):
            k.I("v_cvt_pk_bf16_f32", v(pb + i), v(ACC + 16 * t + 2 * i), v(ACC + 16 * t + 2 * i + 1))
        k.I("buffer_store_dwordx4", v(pb, 4), v(vL16), s(SRD_WS, 4), s(43), mods="offen")
        k.I("buffer_store_dwordx4", v(pb + 4, 4), v(vL16), s(SRD_WS, 4), s(43), mods="offen offset:1024")
        k.I("s_add_u32", s(43), s(43), 2048)
    stamp(k, 4)
    if STAMP: k.wait_all()
    stamp(k, 5)
    stamp_out(k, 6)
    return finish(k), dict(nv=184, na=0)
```

```python
from common import *

def mfma(k, d, A, B, first=False):
    c = "0" if first else v(d, 16)
    return k.I("v_mfma_f32_32x32x16_bf16", v(d, 16), A, B, c)

def wave_setup(k, vLane=1, sW=20):
    k.I("v_lshrrev_b32", v(vLane), 6, v(0))
    k.I("v_readfirstlane_b32", s(sW), v(vLane))
    k.I("v_and_b32", v(vLane), 63, v(0))

def offm(imm, extra=""):
    m = "offen" + (f" offset:{imm}" if imm else "")
    return m + (" " + extra if extra else "")

def dma(k, vaddr, soff, imm, tag):
    return k.I("buffer_load_dwordx4", v(vaddr), s(SRD_WS, 4), s(soff), mods=offm(imm, "lds"), tag=tag)

def t1_main(k, NT, swap, ACC, FR, vB, xop, CH=6):
    def rd(st):
        base = FR + (st & 1) * NT * 4
        for t in range(NT):
            o = (st * NT + t) * 1024
            k.I("ds_read_b128", v(base + 4 * t, 4), v(vB[o >> 16]), mods=f"offset:{o & 65535}")
    k.wait_tags("W0")
    k.I("s_barrier")
    rd(0)
    for st in range(KS):
        if st + 1 < KS:
            if (st + 1) % CH == 0:
                k.wait_tags(f"W{(st + 1) // CH}")
                k.I("s_barrier")
            rd(st + 1)
        base = FR + (st & 1) * NT * 4
        for t in range(NT):
            w = v(base + 4 * t, 4)
            if swap: mfma(k, ACC + 16 * t, xop(st), w, st == 0)
            else: mfma(k, ACC + 16 * t, w, xop(st), st == 0)

def t1_issue(k, NT, vL16, issue_x, sWsrc, sW, CH=6):
    nch = KS // CH
    per = CH * NT // 4
    k.I("s_mul_i32", s(30), s(sW), per * 1024)
    k.I("s_add_u32", s(31), s(sWsrc), s(30))
    for c in range(nch):
        issue_x(list(range(c * CH, (c + 1) * CH)))
        i = 0
        while i < per:
            n = min(4, per - i)
            k.I("s_mov_b32", "m0", s(30))
            for j in range(n):
                dma(k, vL16, 31, j * 1024, f"W{c}")
            i += n
            adv = n * 1024 if i < per else (CH * NT * 1024 - (per - n) * 1024)
            k.I("s_add_u32", s(30), s(30), adv)
            k.I("s_add_u32", s(31), s(31), adv)

QSCALE = LOG2E * DH ** -0.5

def make_qkv(name):
    from k_t2 import T2, role_setup
    k = begin(name)
    exit_if_ge(k, 2, 224)
    load_ptr(k, 4, 8)
    vL, vL16, vH, vN, vT, vO = 1, 2, 5, 6, 7, 8
    ACC, FR, P = 16, 80, 120
    role_setup(k)
    k.I("v_lshrrev_b32", v(vH), 5, v(vL))
    k.I("v_and_b32", v(vN), 31, v(vL))
    k.I("s_and_b32", s(21), s(2), 7)
    k.I("s_lshr_b32", s(22), s(2), 3)
    k.I("s_and_b32", s(23), s(21), 3)
    k.I("s_lshl_b32", s(23), s(23), 2)
    k.I("s_and_b32", s(24), s(22), 3)
    k.I("s_add_u32", s(23), s(23), s(24))
    k.I("s_lshr_b32", s(24), s(21), 2)
    k.I("s_mul_i32", s(24), s(24), 7)
    k.I("s_lshr_b32", s(25), s(22), 2)
    k.I("s_add_u32", s(24), s(24), s(25))
    k.I("s_lshl_b32", s(25), s(23), 2)
    k.I("s_add_u32", s(25), s(25), s(20))
    k.wait_all(vm=False)
    make_srd(k, SRD_WS, 4, WS_SIZE)
    make_srd(k, SRD_A, 4, WS_SIZE)
    k.I("s_mul_i32", s(32), s(25), 36 * 1024)
    k.I("s_add_u32", s(32), s(32), off["XN"])
    k.I("s_mul_i32", s(30), s(24), 4 * 36 * 1024)
    k.I("s_add_u32", s(30), s(30), off["WQKV"])
    k.I("s_mov_b32", s(28), 18)
    g = T2(k, 4, 9, ACC, FR)
    stamp(k, 0)
    k.I("s_cmp_eq_u32", s(19), 0)
    k.if_scc("s_cbranch_scc1", g.loader)
    k.I("s_setprio", 1)
    k.I("s_cmp_ge_u32", s(24), 9)
    k.if_else("s_cbranch_scc1", lambda: g.compute(False), lambda: g.compute(True))
    stamp(k, 2)
    k.I("s_lshr_b32", s(32), s(25), 3)
    k.I("s_and_b32", s(33), s(25), 7)
    k.I("s_mul_i32", s(34), s(32), KV_CHUNK)
    k.I("s_add_u32", s(34), s(34), off["KV"])
    k.I("s_mov_b32", s(35), hexf(QSCALE))
    def pack(t, scale):
        for i in range(8):
            if scale:
                k.I("v_mul_f32", v(ACC + 16 * t + 2 * i), s(35), v(ACC + 16 * t + 2 * i))
                k.I("v_mul_f32", v(ACC + 16 * t + 2 * i + 1), s(35), v(ACC + 16 * t + 2 * i + 1))
            k.I("v_cvt_pk_bf16_f32", v(P + 8 * t + i), v(ACC + 16 * t + 2 * i), v(ACC + 16 * t + 2 * i + 1))
    def epi_qmain():
        k.I("s_lshl_b32", s(36), s(24), 3)
        k.I("s_lshl_b32", s(36), s(36), 16)
        k.I("s_lshl_b32", s(37), s(25), 10)
        k.I("s_add_u32", s(36), s(36), s(37))
        k.I("s_add_u32", s(36), s(36), off["QM"])
        for t in range(4):
            pack(t, True)
            for u in range(2):
                k.I("buffer_store_dwordx4", v(P + 8 * t + 4 * u, 4), v(vL16), s(SRD_WS, 4), s(36), mods="offen")
                k.I("s_add_u32", s(36), s(36), 65536)
    def epi_kmain():
        k.I("s_sub_u32", s(36), s(24), 4)
        k.I("s_mul_i32", s(36), s(36), 8 * KV_HEAD)
        k.I("s_add_u32", s(36), s(36), s(34))
        k.I("s_lshl_b32", s(37), s(33), 10)
        k.I("s_add_u32", s(36), s(36), s(37))
        for t in range(4):
            pack(t, False)
            for u in range(2):
                k.I("buffer_store_dwordx4", v(P + 8 * t + 4 * u, 4), v(vL16), s(SRD_WS, 4), s(36), mods="offen")
                k.I("s_add_u32", s(36), s(36), KV_HEAD)
    def epi_extra():
        k.I("v_lshlrev_b32", v(vO), 14, v(vH))
        k.I("v_lshl_add_u32", v(vO), v(vN), 2, v(vO))
        k.I("s_lshl_b32", s(36), s(25), 7)
        k.I("s_add_u32", s(36), s(36), off["QE"])
        for t in range(2):
            pack(t, True)
            for i in range(8):
                hd = 16 * t + (i & 1) + 4 * (i >> 1)
                k.I("s_add_u32", s(37), s(36), hd * 8192)
                k.I("buffer_store_dword", v(P + 8 * t + i), v(vO), s(SRD_WS, 4), s(37), mods="offen")
        k.I("v_mul_u32_u24", v(vT), 2 * KV_HEAD, v(vH))
        k.I("v_lshl_add_u32", v(vT), v(vN), 2, v(vT))
        k.I("s_lshl_b32", s(36), s(33), 7)
        k.I("s_add_u32", s(36), s(36), s(34))
        k.I("s_add_u32", s(36), s(36), 8192)
        for t in range(2, 4):
            pack(t, False)
            for i in range(8):
                hd = 16 * (t - 2) + (i & 1) + 4 * (i >> 1)
                k.I("s_add_u32", s(37), s(36), hd * KV_HEAD)
                k.I("buffer_store_dword", v(P + 8 * t + i), v(vT), s(SRD_WS, 4), s(37), mods="offen")
    def epi_v():
        k.I("s_mul_i32", s(36), s(33), 1280)
        k.I("s_add_u32", s(36), s(36), s(34))
        k.I("s_add_u32", s(36), s(36), 9216)
        k.I("s_sub_u32", s(37), s(24), 9)
        k.I("s_lshl_b32", s(37), s(37), 7)
        k.I("v_mul_u32_u24", v(vO + 1), 320, v(vH))
        def tile(t):
            k.I("v_add_u32", v(vT), s(37), v(vN))
            if t: k.I("v_add_u32", v(vT), 32 * t, v(vT))
            k.I("v_mul_u32_u24", v(vO), 3641, v(vT))
            k.I("v_lshrrev_b32", v(vO), 16, v(vO))
            k.I("v_mul_u32_u24", v(vO + 2), 18, v(vO))
            k.I("v_sub_u32", v(vT), v(vT), v(vO + 2))
            k.I("v_mul_u32_u24", v(vO), KV_HEAD, v(vO))
            k.I("v_lshl_add_u32", v(vO), v(vT), 4, v(vO))
            k.I("v_add_u32", v(vO), v(vO), v(vO + 1))
            pack(t, False)
            k.I("buffer_store_dwordx4", v(P + 8 * t, 4), v(vO), s(SRD_WS, 4), s(36), mods="offen")
            k.I("buffer_store_dwordx4", v(P + 8 * t + 4, 4), v(vO), s(SRD_WS, 4), s(36), mods="offen offset:640")
        tile(0); tile(1)
        k.I("s_cmp_eq_u32", s(24), 13)
        k.I("s_cbranch_scc1", k.endlabel)
        tile(2); tile(3)
    k.switch(24, [(4, epi_qmain), (8, epi_kmain), (9, epi_extra), (None, epi_v)])
    stamp(k, 3)
    k.wait_all()
    stamp(k, 4)
    stamp_out(k, 5)
    return finish(k), dict(nv=152, na=0)

def make_wo(name):
    from k_t2 import T2, role_setup
    k = begin(name)
    exit_if_ge(k, 2, 144)
    load_ptr(k, 4, 8)
    vL, vL16, vH, vN, vT, vO = 1, 2, 5, 6, 7, 8
    ACC, FR, XR, TM = 16, 48, 72, 88
    role_setup(k)
    k.I("s_and_b32", s(21), s(2), 7)
    k.I("s_lshr_b32", s(22), s(2), 3)
    k.I("s_lshl_b32", s(23), s(21), 1)
    k.I("s_and_b32", s(24), s(22), 1)
    k.I("s_add_u32", s(23), s(23), s(24))
    k.I("s_lshr_b32", s(24), s(22), 1)
    k.I("s_lshl_b32", s(25), s(23), 2)
    k.I("s_add_u32", s(25), s(25), s(20))
    k.wait_all(vm=False)
    make_srd(k, SRD_WS, 4, WS_SIZE)
    make_srd(k, SRD_A, 4, WS_SIZE)
    k.I("s_mul_i32", s(32), s(25), 36 * 1024)
    k.I("s_add_u32", s(32), s(32), off["OM"])
    k.I("s_mul_i32", s(30), s(24), 2 * 36 * 1024)
    k.I("s_add_u32", s(30), s(30), off["WO"])
    k.I("s_mov_b32", s(28), 18)
    k.I("s_mul_i32", s(29), s(25), 36 * 1024)
    k.I("s_lshl_b32", s(37), s(24), 12)
    k.I("s_add_u32", s(29), s(29), s(37))
    k.I("s_add_u32", s(29), s(29), off["XF"])
    g = T2(k, 2, 10, ACC, FR)
    stamp(k, 0)
    k.I("s_cmp_eq_u32", s(19), 0)
    k.if_scc("s_cbranch_scc1", g.loader)
    k.I("s_setprio", 1)
    for gi in range(4):
        k.I("buffer_load_dwordx4", v(XR + 4 * gi, 4), v(vL16), s(SRD_WS, 4), s(29), mods=offm(gi * 1024))
    g.compute(False)
    stamp(k, 2)
    vS, vQ = TM, TM + 1
    for i in range(16):
        k.I("v_lshlrev_b32", v(TM + 2), 16, v(XR + i))
        k.I("v_and_b32", v(TM + 3), "0xffff0000", v(XR + i))
        k.I("v_add_f32", v(ACC + 2 * i), v(ACC + 2 * i), v(TM + 2))
        k.I("v_add_f32", v(ACC + 2 * i + 1), v(ACC + 2 * i + 1), v(TM + 3))
        k.I("v_cvt_pk_bf16_f32", v(XR + i), v(ACC + 2 * i), v(ACC + 2 * i + 1))
        k.I("v_lshlrev_b32", v(TM + 2), 16, v(XR + i))
        k.I("v_and_b32", v(TM + 3), "0xffff0000", v(XR + i))
        if i == 0:
            k.I("v_add_f32", v(vS), v(TM + 2), v(TM + 3))
            k.I("v_mul_f32", v(vQ), v(TM + 2), v(TM + 2))
        else:
            k.I("v_add_f32", v(vS), v(vS), v(TM + 2))
            k.I("v_fmac_f32", v(vQ), v(TM + 2), v(TM + 2))
            k.I("v_add_f32", v(vS), v(vS), v(TM + 3))
        k.I("v_fmac_f32", v(vQ), v(TM + 3), v(TM + 3))
    for g in range(4):
        k.I("buffer_store_dwordx4", v(XR + 4 * g, 4), v(vL16), s(SRD_WS, 4), s(29), mods=offm(g * 1024))
    k.I("s_mul_i32", s(32), s(25), 9)
    k.I("s_add_u32", s(32), s(32), s(24))
    k.I("s_lshl_b32", s(32), s(32), 9)
    k.I("s_add_u32", s(32), s(32), off["ST"])
    k.I("v_lshlrev_b32", v(vT), 3, v(vL))
    k.I("buffer_store_dwordx2", v(vS, 2), v(vT), s(SRD_WS, 4), s(32), mods="offen")
    stamp(k, 3)
    k.wait_all()
    stamp(k, 4)
    stamp_out(k, 5)
    return finish(k), dict(nv=96, na=0)
```

```python
from common import *

NLN2 = -0.6931471805599453
NPART = 5
def red_body(k, mode, wg=2):
    vT, vN, vP, vOff, vRow = 0, 1, 2, 3, 4
    k.I("v_and_b32", v(vN), 7, v(vT))
    k.I("v_lshrrev_b32", v(vP), 3, v(vT))
    k.I("s_lshr_b32", s(20), s(wg), 2)
    k.I("s_and_b32", s(21), s(wg), 3)
    k.I("s_lshl_b32", s(21), s(21), 3)
    k.I("s_mul_i32", s(22), s(20), 36864)
    k.I("s_lshl_b32", s(23), s(21), 4)
    k.I("s_add_u32", s(22), s(22), s(23))
    k.I("v_lshlrev_b32", v(vOff), 9, v(vP))
    k.I("v_lshl_add_u32", v(vOff), v(vN), 4, v(vOff))
    if mode in (0, 2):
        k.I("s_lshl_b32", s(24), s(wg), 3)
        k.I("v_add_u32", v(vRow), s(24), v(vN))
        k.I("v_mul_u32_u24", v(vRow), 1152, v(vRow))
        k.I("v_lshl_add_u32", v(vRow), v(vP), 4, v(vRow))
    X = 8
    P = 12
    A = 32
    T = 40
    if mode == 0:
        k.I("buffer_load_dwordx4", v(X, 4), v(vRow), s(SRD_A, 4), 0, mods="offen")
        for i in range(4):
            k.I("v_lshlrev_b32", v(A + 2 * i), 16, v(X + i))
            k.I("v_and_b32", v(A + 2 * i + 1), "0xffff0000", v(X + i))
    else:
        for q in range(NPART):
            k.I("s_add_u32", s(25), s(22), off["PART"] + q * XF_BYTES)
            k.I("buffer_load_dwordx4", v(P + q * 4, 4), v(vOff), s(SRD_WS, 4), s(25), mods="offen")
        k.I("s_add_u32", s(25), s(22), off["XF"])
        k.I("buffer_load_dwordx4", v(X, 4), v(vOff), s(SRD_WS, 4), s(25), mods="offen")
        for q in range(NPART):
            for i in range(4):
                src = P + q * 4 + i
                if q == 0:
                    k.I("v_lshlrev_b32", v(A + 2 * i), 16, v(src))
                    k.I("v_and_b32", v(A + 2 * i + 1), "0xffff0000", v(src))
                else:
                    k.I("v_lshlrev_b32", v(T + 2 * i), 16, v(src))
                    k.I("v_and_b32", v(T + 2 * i + 1), "0xffff0000", v(src))
            if q:
                for i in range(8): k.I("v_add_f32", v(A + i), v(A + i), v(T + i))
        k.I("s_mov_b32", s(26), hexf(NLN2))
        for i in range(4):
            k.I("v_lshlrev_b32", v(T + 2 * i), 16, v(X + i))
            k.I("v_and_b32", v(T + 2 * i + 1), "0xffff0000", v(X + i))
        for i in range(8): k.I("v_fma_f32", v(A + i), v(A + i), s(26), v(T + i))
        for i in range(4): k.I("v_cvt_pk_bf16_f32", v(X + i), v(A + 2 * i), v(A + 2 * i + 1))
        if mode == 2:
            k.I("buffer_store_dwordx4", v(X, 4), v(vRow), s(SRD_A, 4), 0, mods="offen plain")
            return
        for i in range(4):
            k.I("v_lshlrev_b32", v(A + 2 * i), 16, v(X + i))
            k.I("v_and_b32", v(A + 2 * i + 1), "0xffff0000", v(X + i))
    k.I("s_add_u32", s(25), s(22), off["XF"])
    k.I("buffer_store_dwordx4", v(X, 4), v(vOff), s(SRD_WS, 4), s(25), mods="offen")
    vS, vQ = T + 8, T + 9
    k.I("v_add_f32", v(vS), v(A), v(A + 1))
    k.I("v_mul_f32", v(vQ), v(A), v(A))
    k.I("v_fmac_f32", v(vQ), v(A + 1), v(A + 1))
    for i in range(2, 8):
        k.I("v_add_f32", v(vS), v(vS), v(A + i))
        k.I("v_fmac_f32", v(vQ), v(A + i), v(A + i))
    for r in (vS, vQ):
        k.I("v_add_f32_dpp", v(r), v(r), v(r), mods="row_ror:8 row_mask:0xf bank_mask:0xf")
    for r in (vS, vQ):
        k.I("v_mov_b32", v(T), v(r))
        k.I("v_permlane16_swap_b32", v(T), v(r))
        k.I("v_add_f32", v(r), v(r), v(T))
    for r in (vS, vQ):
        k.I("v_mov_b32", v(T), v(r))
        k.I("v_permlane32_swap_b32", v(T), v(r))
        k.I("v_add_f32", v(r), v(r), v(T))
    k.I("v_lshrrev_b32", v(T), 6, v(vT))
    k.I("v_lshlrev_b32", v(T), 3, v(T))
    k.I("v_mul_u32_u24", v(T + 1), 80, v(vN))
    k.I("v_add_u32", v(T), v(T), v(T + 1))
    k.I("ds_write_b64", v(T), v(vS, 2))
    k.I("s_barrier")
    for w in range(9):
        k.I("ds_read_b64", v(T + 10 + 2 * w, 2), v(T + 1), mods=f"offset:{8 * w}")
    k.I("v_add_f32", v(vS), v(T + 10), v(T + 12))
    k.I("v_add_f32", v(vQ), v(T + 11), v(T + 13))
    for w in range(2, 9):
        k.I("v_add_f32", v(vS), v(vS), v(T + 10 + 2 * w))
        k.I("v_add_f32", v(vQ), v(vQ), v(T + 11 + 2 * w))
    k.I("v_mul_f32", v(vS), hexf(1.0 / D), v(vS))
    k.I("v_mul_f32", v(vQ), hexf(1.0 / D), v(vQ))
    k.I("v_fma_f32", v(vQ), "-" + v(vS), v(vS), v(vQ))
    k.I("v_max_f32", v(vQ), 0, v(vQ))
    k.I("v_add_f32", v(vQ), hexf(1e-5), v(vQ))
    k.I("v_rsq_f32", v(vQ), v(vQ))
    k.I("v_mul_f32", v(vS), v(vS), v(vQ))
    for i in range(8):
        k.I("v_fma_f32", v(A + i), v(A + i), v(vQ), "-" + v(vS))
    for i in range(4):
        k.I("v_cvt_pk_bf16_f32", v(X + i), v(A + 2 * i), v(A + 2 * i + 1))
    k.I("s_add_u32", s(25), s(22), off["XN"])
    k.I("buffer_store_dwordx4", v(X, 4), v(vOff), s(SRD_WS, 4), s(25), mods="offen")

def make_red(name, mode):
    k = begin(name)
    exit_if_ge(k, 2, 256)
    load_ptr(k, 4, 8)
    load_ptr(k, 6, 6)
    k.wait_all(vm=False)
    make_srd(k, SRD_WS, 4, WS_SIZE)
    make_srd(k, SRD_A, 6, S * D * 2)
    red_body(k, mode)
    return finish(k)

def make_prep(name):
    NTR = 534; NX = 256; NG = 72
    k = begin(name)
    exit_if_ge(k, 2, NTR + NX + NG + 32)
    k.I("s_load_dwordx4", s(36, 4), s(0, 2), 0)
    k.I("s_load_dwordx2", s(40, 2), s(0, 2), 16)
    k.I("s_load_dwordx4", s(44, 4), s(0, 2), 32)
    load_ptr(k, 4, 8)
    vL, vM, vH, vCol, vOff, vT, vPi, vA = 1, 2, 3, 4, 5, 6, 7, 8
    k.I("v_and_b32", v(vL), 63, v(0))
    k.I("v_and_b32", v(vM), 31, v(0))
    k.I("v_bfe_u32", v(vH), v(0), 5, 1)
    k.I("v_lshrrev_b32", v(vT), 6, v(0))
    k.I("v_readfirstlane_b32", s(20), v(vT))
    k.wait_all(vm=False)
    make_srd(k, SRD_WS, 4, WS_SIZE)
    Lx = k.newlabel("X"); Lg = k.newlabel("G"); Lo = k.newlabel("O")
    k.I("s_cmp_ge_u32", s(2), NTR + NX + NG); k.I("s_cbranch_scc1", Lo)
    k.I("s_cmp_ge_u32", s(2), NTR + NX); k.I("s_cbranch_scc1", Lg)
    k.I("s_cmp_ge_u32", s(2), NTR); k.I("s_cbranch_scc1", Lx)
    Lw2 = k.newlabel("TW2"); Lv = k.newlabel("TV"); Lqk = k.newlabel("TQK"); Lwo = k.newlabel("TWO"); Lgo = k.newlabel("TGO")
    def div3(dst_q, dst_r, src):
        k.I("s_mul_i32", s(dst_q), s(src), 21846)
        k.I("s_lshr_b32", s(dst_q), s(dst_q), 16)
        k.I("s_mul_i32", s(dst_r), s(dst_q), 3)
        k.I("s_sub_u32", s(dst_r), s(src), s(dst_r))
    k.I("s_mov_b32", s(56), 0); k.I("s_mov_b32", s(57), 0); k.I("s_mov_b32", s(58), 12); k.I("s_mov_b32", s(55), 1)
    k.I("s_cmp_ge_u32", s(2), 507); k.I("s_cbranch_scc1", Lwo)
    k.I("s_cmp_ge_u32", s(2), 459); k.I("s_cbranch_scc1", Lqk)
    k.I("s_cmp_ge_u32", s(2), 432); k.I("s_cbranch_scc1", Lv)
    k.I("s_cmp_ge_u32", s(2), 216); k.I("s_cbranch_scc1", Lw2)
    div3(22, 23, 2)
    make_srd(k, SRD_A, 44, D * F * 2)
    k.I("s_mov_b32", s(50), 9216)
    k.I("s_mul_i32", s(51), s(23), 192 * 9216)
    k.I("s_lshl_b32", s(24), s(22), 7)
    k.I("s_add_u32", s(51), s(51), s(24))
    k.I("s_mul_i32", s(52), s(22), 2 * 36 * 1024)
    k.I("s_mul_i32", s(24), s(23), 12 * 1024)
    k.I("s_add_u32", s(52), s(52), s(24))
    k.I("s_add_u32", s(52), s(52), off["W1"])
    k.I("s_mov_b32", s(53), 36 * 1024)
    k.I("s_mov_b32", s(54), 1024)
    k.I("s_branch", Lgo)
    k.label(Lw2)
    k.I("s_sub_u32", s(21), s(2), 216)
    k.I("s_mul_i32", s(23), s(21), 7282); k.I("s_lshr_b32", s(23), s(23), 16)
    k.I("s_mul_i32", s(22), s(23), 9); k.I("s_sub_u32", s(22), s(21), s(22))
    make_srd(k, SRD_A, 46, D * F * 2)
    k.I("s_mov_b32", s(50), 1152)
    k.I("s_mul_i32", s(51), s(23), 192 * 1152)
    k.I("s_lshl_b32", s(24), s(22), 7)
    k.I("s_add_u32", s(51), s(51), s(24))
    div3(24, 25, 22)
    k.I("s_mul_i32", s(52), s(24), 288 * 6144)
    k.I("s_lshl_b32", s(25), s(25), 11)
    k.I("s_add_u32", s(52), s(52), s(25))
    k.I("s_mul_i32", s(24), s(23), 12 * 6144)
    k.I("s_add_u32", s(52), s(52), s(24))
    k.I("s_add_u32", s(52), s(52), off["W2"])
    k.I("s_mov_b32", s(53), 1024)
    k.I("s_mov_b32", s(54), 6144)
    k.I("s_branch", Lgo)
    def qkv_dst(sG, sThird):
        k.I("s_lshr_b32", s(24), s(sG), 2)
        k.I("s_mul_i32", s(52), s(24), 4 * 36 * 1024)
        k.I("s_and_b32", s(25), s(sG), 3); k.I("s_lshl_b32", s(25), s(25), 10)
        k.I("s_add_u32", s(52), s(52), s(25))
        k.I("s_mul_i32", s(24), s(sThird), 12 * 4096)
        k.I("s_add_u32", s(52), s(52), s(24))
        k.I("s_add_u32", s(52), s(52), off["WQKV"])
        k.I("s_mov_b32", s(53), 1024)
        k.I("s_mov_b32", s(54), 4096)
        k.I("s_mov_b32", s(55), 0)
        make_srd(k, SRD_A, 38, D * 3 * D * 2)
        k.I("s_mov_b32", s(50), 3456)
        k.I("s_mul_i32", s(51), s(sThird), 192 * 3456)
    k.label(Lv)
    k.I("s_sub_u32", s(21), s(2), 432)
    div3(22, 23, 21)
    k.I("s_lshl_b32", s(26), s(22), 1); k.I("s_add_u32", s(26), s(26), 36)
    qkv_dst(26, 23)
    k.I("s_lshl_b32", s(24), s(22), 7)
    k.I("s_add_u32", s(51), s(51), s(24))
    k.I("s_add_u32", s(51), s(51), 2304)
    k.I("s_branch", Lgo)
    k.label(Lqk)
    k.I("s_sub_u32", s(21), s(2), 459)
    div3(22, 23, 21)
    k.I("s_lshl_b32", s(26), s(22), 1)
    qkv_dst(26, 23)
    k.I("s_lshr_b32", s(24), s(22), 3); k.I("s_mul_i32", s(24), s(24), 1152)
    k.I("s_and_b32", s(25), s(22), 7); k.I("s_mul_i32", s(25), s(25), 144)
    k.I("s_add_u32", s(51), s(51), s(24)); k.I("s_add_u32", s(51), s(51), s(25))
    k.I("s_mov_b32", s(57), 1)
    k.I("s_branch", Lgo)
    k.label(Lwo)
    k.I("s_sub_u32", s(21), s(2), 507)
    div3(22, 23, 21)
    make_srd(k, SRD_A, 40, D * D * 2)
    k.I("s_mov_b32", s(50), 1152)
    k.I("s_mul_i32", s(51), s(23), 216 * 1152)
    k.I("s_lshl_b32", s(24), s(22), 7)
    k.I("s_add_u32", s(51), s(51), s(24))
    k.I("s_mul_i32", s(52), s(22), 2 * 36 * 1024)
    k.I("s_mul_i32", s(24), s(23), 12 * 2048)
    k.I("s_add_u32", s(52), s(52), s(24))
    k.I("s_add_u32", s(52), s(52), off["WO"])
    k.I("s_mov_b32", s(53), 1024)
    k.I("s_mov_b32", s(54), 2048)
    k.I("s_mov_b32", s(56), 1)
    k.I("s_cmp_eq_u32", s(23), 2)
    k.I("s_cselect_b32", s(58), 8, 12)
    k.label(Lgo)
    k.I("s_cmp_ge_u32", s(20), 8)
    Lbar = k.newlabel("BAR")
    k.I("s_cbranch_scc1", Lbar)
    k.I("v_lshrrev_b32", v(vT), 3, v(vL))
    k.I("v_mul_lo_u32", v(vT), v(vT), s(50))
    k.I("v_and_b32", v(vOff), 7, v(vL))
    k.I("v_lshlrev_b32", v(vCol), 4, v(vOff))
    k.I("v_lshrrev_b32", v(vA), 2, v(vOff))
    k.I("v_mul_u32_u24", v(vA), 72, v(vA))
    k.I("v_and_b32", v(vPi), 1, v(vOff))
    k.I("v_lshl_add_u32", v(vA), v(vPi), 4, v(vA))
    k.I("v_bfe_u32", v(vPi), v(vOff), 1, 1)
    k.I("v_mul_u32_u24", v(vPi), 36, v(vPi))
    k.I("v_add_u32", v(vA), v(vA), v(vPi))
    k.I("s_cmp_eq_u32", s(57), 1)
    k.I("s_cselect_b64", s(30, 2), -1, 0)
    k.I("v_cndmask_b32", v(vCol), v(vCol), v(vA), s(30, 2))
    k.I("v_add_u32", v(vOff), v(vCol), v(vT))
    k.I("s_add_u32", s(59), s(56), 3)
    k.I("s_mul_i32", s(24), s(20), s(59))
    k.I("s_lshl_b32", s(25), s(24), 10)
    k.I("s_lshl_b32", s(24), s(24), 3)
    k.I("s_mul_i32", s(24), s(24), s(50))
    k.I("s_add_u32", s(24), s(24), s(51))
    k.I("s_lshl_b32", s(26), s(50), 3)
    def piece():
        k.I("s_mov_b32", "m0", s(25))
        k.I("buffer_load_dwordx4", v(vOff), s(SRD_A, 4), s(24), mods="offen lds")
        k.I("s_add_u32", s(24), s(24), s(26))
        k.I("s_add_u32", s(25), s(25), 1024)
    for i in range(3): piece()
    k.I("s_cmp_eq_u32", s(56), 0)
    k.if_scc("s_cbranch_scc1", piece)
    k.I("v_and_b32", v(vT), 3, v(vL))
    k.I("v_and_b32", v(vCol), 1, v(vT))
    k.I("v_lshlrev_b32", v(vCol), 1, v(vCol))
    k.I("v_lshrrev_b32", v(vA), 1, v(vT))
    k.I("v_or_b32", v(vCol), v(vCol), v(vA))
    k.I("s_cmp_eq_u32", s(55), 1)
    k.I("s_cselect_b64", s(30, 2), -1, 0)
    k.I("v_cndmask_b32", v(vCol), v(vT), v(vCol), s(30, 2))
    k.I("v_lshlrev_b32", v(vCol), 3, v(vCol))
    k.I("v_bfe_u32", v(vT), v(vL), 4, 1)
    k.I("v_lshl_add_u32", v(vCol), v(vT), 5, v(vCol))
    k.I("v_bfe_u32", v(vT), v(vL), 2, 2)
    k.I("s_sub_u32", s(27), 3, s(56))
    k.I("v_lshlrev_b32", v(vPi), s(27), v(vH))
    k.I("v_add_u32", v(vT), v(vT), v(vPi))
    k.I("v_lshl_add_u32", v(vA), v(vT), 7, v(vCol))
    k.I("s_waitcnt", "vmcnt(0)")
    k.label(Lbar)
    k.I("s_barrier")
    k.I("s_cmp_ge_u32", s(20), 8)
    k.I("s_cbranch_scc1", k.endlabel)
    k.I("v_lshlrev_b32", v(vOff), 4, v(vL))
    k.I("s_lshr_b32", s(24), s(20), 2)
    k.I("s_and_b32", s(25), s(20), 3)
    k.I("s_mul_i32", s(25), s(25), 3)
    k.I("s_cmp_ge_u32", s(25), s(58))
    k.I("s_cbranch_scc1", k.endlabel)
    k.I("s_lshl_b32", s(26), s(24), 6)
    k.I("s_mul_i32", s(28), s(56), 256)
    k.I("s_add_u32", s(28), s(28), 2048)
    k.I("s_mul_i32", s(27), s(25), s(28))
    k.I("s_add_u32", s(26), s(26), s(27))
    k.I("v_add_u32", v(vA), s(26), v(vA))
    k.I("s_mul_i32", s(26), s(24), s(53))
    k.I("s_mul_i32", s(27), s(25), s(54))
    k.I("s_add_u32", s(26), s(26), s(27))
    k.I("s_add_u32", s(26), s(26), s(52))
    def rds(step_bytes, jj_bytes):
        for i in range(3):
            for jj in range(2):
                k.I("ds_read_b64_tr_b16", v(16 + 4 * i + 2 * jj, 2), v(vA), mods=f"offset:{i * step_bytes + jj * jj_bytes}")
    k.I("s_cmp_eq_u32", s(56), 1)
    k.if_else("s_cbranch_scc1", lambda: rds(2048, 512), lambda: rds(2304, 1024))
    for i in range(3):
        if i:
            k.I("s_add_u32", s(25), s(25), 1)
            k.I("s_cmp_ge_u32", s(25), s(58))
            k.I("s_cbranch_scc1", k.endlabel)
        k.I("buffer_store_dwordx4", v(16 + 4 * i, 4), v(vOff), s(SRD_WS, 4), s(26), mods="offen")
        k.I("s_add_u32", s(26), s(26), s(54))
    k.I("s_endpgm")
    k.label(Lx)
    make_srd(k, SRD_A, 36, S * D * 2)
    k.I("s_sub_u32", s(3), s(2), NTR)
    red_body(k, 0, wg=3)
    k.I("s_endpgm")
    k.label(Lg)
    k.I("s_cmp_ge_u32", s(20), 1)
    k.I("s_cbranch_scc1", k.endlabel)
    k.I("s_sub_u32", s(21), s(2), NTR + NX)
    Lwe = k.newlabel("WE"); Lst = k.newlabel("ST")
    DAT = 16; TMP = 32
    k.I("s_cmp_ge_u32", s(21), 48); k.I("s_cbranch_scc1", Lwe)
    k.I("s_mul_i32", s(22), s(21), 5462); k.I("s_lshr_b32", s(22), s(22), 16)
    k.I("s_mul_i32", s(23), s(22), 12); k.I("s_sub_u32", s(23), s(21), s(23))
    k.I("s_mul_i32", s(23), s(23), 3)
    make_srd(k, SRD_A, 38, D * 3 * D * 2)
    k.I("s_lshr_b32", s(28), s(22), 1); k.I("s_mul_i32", s(28), s(28), 576)
    k.I("s_and_b32", s(27), s(22), 1); k.I("s_mul_i32", s(27), s(27), 288)
    k.I("s_add_u32", s(27), s(27), s(28)); k.I("s_add_u32", s(27), s(27), 16)
    k.I("v_lshrrev_b32", v(vT), 1, v(vM))
    k.I("v_mul_u32_u24", v(vT), 18, v(vT))
    k.I("v_and_b32", v(vCol), 1, v(vM))
    k.I("v_add3_u32", v(vCol), v(vCol), v(vT), s(27))
    k.I("v_mul_u32_u24", v(vT), 8 * 3456, v(vH))
    k.I("v_lshl_add_u32", v(vOff), v(vCol), 1, v(vT))
    k.I("s_mul_i32", s(56), s(23), 16 * 3456)
    for i in range(3):
        for j in range(8):
            k.I("buffer_load_ushort", v(TMP + 8 * i + j), v(vOff), s(SRD_A, 4), s(56), mods="offen")
            k.I("s_add_u32", s(56), s(56), 3456 * (1 if j < 7 else 9))
    k.I("s_lshl_b32", s(51), s(22), 10)
    k.I("s_mul_i32", s(24), s(23), 4096)
    k.I("s_add_u32", s(51), s(51), s(24))
    k.I("s_add_u32", s(51), s(51), off["WQKV"] + 8 * 4 * 36 * 1024)
    k.I("s_mov_b32", s(52), 4096)
    k.I("s_branch", Lst)
    k.label(Lwe)
    k.I("s_sub_u32", s(21), s(21), 48)
    k.I("s_mul_i32", s(21), s(21), 3)
    make_srd(k, SRD_A, 40, D * D * 2)
    k.I("v_and_b32", v(vPi), 0x13, v(vM))
    k.I("v_and_b32", v(vT), 4, v(vM))
    k.I("v_lshl_or_b32", v(vPi), v(vT), 1, v(vPi))
    k.I("v_and_b32", v(vT), 8, v(vM))
    k.I("v_lshrrev_b32", v(vT), 1, v(vT))
    k.I("v_or_b32", v(vPi), v(vPi), v(vT))
    k.I("v_mul_u32_u24", v(vT), 72 * 1152, v(vH))
    k.I("v_lshl_add_u32", v(vOff), v(vPi), 1, v(vT))
    for i in range(3):
        k.I("s_add_u32", s(22), s(21), i)
        k.I("s_lshr_b32", s(23), s(22), 2)
        k.I("s_and_b32", s(24), s(22), 3)
        k.I("s_mul_i32", s(56), s(24), 144 * 1152)
        k.I("s_lshl_b32", s(25), s(23), 6)
        k.I("s_add_u32", s(56), s(56), s(25))
        for j in range(8):
            r = 18 * (j >> 1) + 16 + (j & 1)
            k.I("s_add_u32", s(57), s(56), r * 1152)
            k.I("buffer_load_ushort", v(TMP + 8 * i + j), v(vOff), s(SRD_A, 4), s(57), mods="offen")
        k.I("s_lshr_b32", s(25), s(23), 1); k.I("s_mul_i32", s(60 + i), s(25), 2 * 36 * 1024)
        k.I("s_add_u32", s(24), s(24), 32); k.I("s_lshl_b32", s(24), s(24), 11)
        k.I("s_add_u32", s(60 + i), s(60 + i), s(24))
        k.I("s_and_b32", s(25), s(23), 1); k.I("s_lshl_b32", s(25), s(25), 10)
        k.I("s_add_u32", s(60 + i), s(60 + i), s(25))
        k.I("s_add_u32", s(60 + i), s(60 + i), off["WO"])
    k.wait_all(lgkm=False)
    for i in range(12):
        k.I("v_lshl_or_b32", v(DAT + i), v(TMP + 2 * i + 1), 16, v(TMP + 2 * i))
    k.I("v_lshlrev_b32", v(vOff), 4, v(vL))
    for i in range(3):
        k.I("buffer_store_dwordx4", v(DAT + 4 * i, 4), v(vOff), s(SRD_WS, 4), s(60 + i), mods="offen")
    k.I("s_endpgm")
    k.label(Lst)
    k.wait_all(lgkm=False)
    for i in range(12):
        k.I("v_lshl_or_b32", v(DAT + i), v(TMP + 2 * i + 1), 16, v(TMP + 2 * i))
    k.I("v_lshlrev_b32", v(vOff), 4, v(vL))
    for i in range(3):
        k.I("buffer_store_dwordx4", v(DAT + 4 * i, 4), v(vOff), s(SRD_WS, 4), s(51), mods="offen")
        k.I("s_add_u32", s(51), s(51), s(52))
    k.I("s_endpgm")
    k.label(Lo)
    k.I("s_sub_u32", s(20), s(2), NTR + NX + NG)
    k.I("s_mul_i32", s(20), s(20), KV_HEAD)
    k.I("s_add_u32", s(20), s(20), off["KV"])
    k.I("v_cmp_gt_u32", "vcc", 256, v(0))
    k.I("s_and_saveexec_b64", s(30, 2), "vcc")
    k.I("s_cbranch_execz", k.endlabel)
    k.I("v_lshrrev_b32", v(1), 1, v(0))
    k.I("v_lshrrev_b32", v(2), 4, v(1))
    k.I("v_mul_u32_u24", v(2), KV_CHUNK, v(2))
    k.I("v_and_b32", v(1), 15, v(1))
    k.I("v_mul_u32_u24", v(1), 640, v(1))
    k.I("v_and_b32", v(3), 1, v(0))
    k.I("v_mul_u32_u24", v(3), 320, v(3))
    k.I("v_add3_u32", v(1), v(1), v(2), v(3))
    k.I("v_add_u32", v(1), 9216 + 18 * 16, v(1))
    for i in range(4):
        k.I("v_mov_b32", v(4 + i), "0x3f803f80")
        k.I("v_mov_b32", v(8 + i), 0)
    k.I("buffer_store_dwordx4", v(4, 4), v(1), s(SRD_WS, 4), s(20), mods="offen plain")
    k.I("buffer_store_dwordx4", v(8, 4), v(1), s(SRD_WS, 4), s(20), mods="offen offset:16 plain")
    return finish(k)
```

```python
from common import *
from k_gemm1 import mfma, offm

def role_setup(k, vL=1, vL16=2, sW=20, sRole=19):
    k.I("v_lshrrev_b32", v(vL), 6, v(0))
    k.I("v_readfirstlane_b32", s(sW), v(vL))
    k.I("v_and_b32", v(vL), 63, v(0))
    k.I("v_lshlrev_b32", v(vL16), 4, v(vL))
    k.I("s_lshr_b32", s(sRole), s(sW), 2)
    k.I("s_and_b32", s(sW), s(sW), 3)

class T2:
    def __init__(self, k, NT, NB, ACC, FR, vL16=2, vA=3, vX=4, SS=2, vA2=12, vX2=13):
        self.k = k; self.NT = NT; self.NB = NB; self.ACC = ACC; self.FR = FR
        self.vL16 = vL16; self.vA = vA; self.vX = vX; self.SS = SS; self.vA2 = vA2; self.vX2 = vX2
        self.WB = SS * NT * 1024
        self.STG = self.WB + 4 * SS * 1024
        self.PW = SS * NT // 4
        self.P = self.PW + SS
        assert (SS * NT) % 4 == 0 and SS == 2
    def loader(self):
        k = self.k; NB = self.NB
        k.I("s_mul_i32", s(31), s(20), self.PW * 1024)
        k.I("s_add_u32", s(30), s(30), s(31))
        k.I("s_mov_b32", s(33), 0)
        k.I("s_mul_i32", s(35), s(20), self.SS * 1024)
        k.I("s_add_u32", s(35), s(35), self.WB)
        k.I("s_mov_b32", s(36), s(28))
        def issue():
            k.I("s_add_u32", s(34), s(33), s(31))
            k.I("s_mov_b32", "m0", s(34))
            for j in range(self.PW):
                k.I("buffer_load_dwordx4", v(self.vL16), s(SRD_A, 4), s(30), mods=offm(j * 1024, "lds"))
            k.I("s_add_u32", s(34), s(33), s(35))
            k.I("s_mov_b32", "m0", s(34))
            for j in range(self.SS):
                k.I("buffer_load_dwordx4", v(self.vL16), s(SRD_A, 4), s(32), mods=offm(j * 1024, "lds"))
            k.I("s_add_u32", s(30), s(30), self.WB)
            k.I("s_add_u32", s(32), s(32), self.SS * 1024)
            k.I("s_add_u32", s(33), s(33), self.STG)
            k.I("s_cmp_ge_u32", s(33), NB * self.STG)
            k.I("s_cselect_b32", s(33), 0, s(33))
            k.I("s_sub_u32", s(36), s(36), 1)
            k.I("s_cmp_eq_u32", s(36), 0)
            k.I("s_cselect_b32", s(SRD_A + 2), 0, s(SRD_A + 2))
        for i in range(NB - 1): issue()
        k.I("s_waitcnt", f"vmcnt({(NB - 2) * self.P})")
        k.I("s_barrier")
        def body():
            k.I("s_waitcnt", f"vmcnt({(NB - 3) * self.P})")
            k.I("s_barrier")
            issue()
        lab = k.newlabel("LL")
        items = []; k.stack.append(items); body()
        k.I("s_sub_u32", s(28), s(28), 1); k.I("s_cmp_lg_u32", s(28), 0); k.I("s_cbranch_scc1", lab)
        k.stack.pop(); k.cur.append(Loop(lab, items, 4))
        k.I("s_endpgm")
    def compute(self, swap=False, zero_acc=True):
        k = self.k; NT = self.NT; NB = self.NB; FR = self.FR; ACC = self.ACC
        SET = (NT + 1) * 4
        vA, vX, vA2, vX2 = self.vA, self.vX, self.vA2, self.vX2
        k.I("s_mul_i32", s(35), s(20), self.SS * 1024)
        k.I("s_add_u32", s(35), s(35), self.WB)
        k.I("s_mov_b32", s(40), 0)
        def rd(setid, step, ba, bx):
            b = FR + SET * setid
            ops = [lambda: k.I("ds_read_b128", v(b + 4 * NT, 4), v(bx), mods=f"offset:{step * 1024}")]
            for t in range(NT):
                ops.append(lambda t=t: k.I("ds_read_b128", v(b + 4 * t, 4), v(ba), mods=f"offset:{(step * NT + t) * 1024}"))
            return ops
        def mm(t, setid):
            b = FR + SET * setid
            w = v(b + 4 * t, 4); x = v(b + 4 * NT, 4)
            if swap: mfma(k, ACC + 16 * t, x, w)
            else: mfma(k, ACC + 16 * t, w, x)
        for i in range(16 * NT): k.I("v_mov_b32", v(ACC + i), 0)
        k.I("v_mov_b32", v(vA), v(self.vL16))
        k.I("v_add_u32", v(vX), s(35), v(self.vL16))
        k.I("s_barrier")
        for f in rd(0, 0, vA, vX): f()
        def half(cur, reads, extra):
            q = list(reads)
            for t in range(NT):
                mm(t, cur)
                q.pop(0)()
                if t == 0: q.pop(0)()
                for f in extra.get(t, []): f()
        def nextslot():
            k.I("s_add_u32", s(40), s(40), self.STG)
            k.I("s_cmp_ge_u32", s(40), NB * self.STG)
            k.I("s_cselect_b32", s(40), 0, s(40))
            k.I("s_add_u32", s(42), s(40), s(35))
        def base2():
            k.I("v_add_u32", v(vA2), s(40), v(self.vL16))
            k.I("v_add_u32", v(vX2), s(42), v(self.vL16))
        def bar(): k.I("s_barrier")
        def mv():
            k.I("v_mov_b32", v(vA), v(vA2))
            k.I("v_mov_b32", v(vX), v(vX2))
        def cnt():
            k.I("s_sub_u32", s(28), s(28), 1)
            k.I("s_cmp_lg_u32", s(28), 0)
        lab = k.newlabel("LC")
        items = []; k.stack.append(items)
        e1 = {}
        e1.setdefault(0, []).append(nextslot)
        e1.setdefault(min(1, NT - 1), []).append(base2)
        e1.setdefault(max(NT - 2, 0) if NT > 2 else 1, []).append(bar)
        half(0, rd(1, 1, vA, vX), e1)
        e2 = {}
        e2.setdefault(min(1, NT - 1), []).append(mv)
        e2.setdefault(NT - 1, []).append(cnt)
        half(1, rd(0, 0, vA2, vX2), e2)
        k.I("s_cbranch_scc1", lab)
        k.stack.pop(); k.cur.append(Loop(lab, items, 18))
```

```python
import sys, os
from common import *
import k_prep, k_gemm1, k_ffn, k_attn

def build(out, nlaunch=None, extra_launches=0):
    kernels = []
    def add(res, nv=None, na=0):
        if isinstance(res, tuple): k, d = res; kernels.append((k, d["nv"], d["na"]))
        else: kernels.append((res, nv, na))
    add(k_prep.make_prep("prep_kernel"), 72)
    add(k_gemm1.make_qkv("qkv_kernel"))
    add(k_attn.make_attn("attn_kernel"))
    add(k_gemm1.make_wo("wo_kernel"))
    add(k_ffn.make_ffn1("ffn1_kernel"))
    add(k_ffn.make_ffn2("ffn2_kernel"))
    add(k_prep.make_red("redmid_kernel", 1), 72)
    add(k_prep.make_red("redlast_kernel", 2), 72)
    L = []
    L.append(("prep_kernel", 534 + 256 + 72 + 32, 576, 32768))
    for layer in range(2):
        L.append(("qkv_kernel", 224, 512, 147456))
        L.append(("attn_kernel", 256, 576, 163840))
        L.append(("wo_kernel", 144, 512, 122880))
        L.append(("ffn1_kernel", 256, 512, 163840))
        L.append(("ffn2_kernel", 240, 512, 20480 * int(os.environ.get("FFN2_NB", "7"))))
        L.append(("redmid_kernel" if layer == 0 else "redlast_kernel", 256, 576, 1024))
    t = []
    hdr = open("interleave_layers__mha_block__dense_activation_silu__prompt.s.ref").read().split("\n")
    for line in hdr:
        if line.startswith("; Override") : break
        t.append(line)
    for (n, g, b, l) in L:
        t.append(f"; @launch kernel={n} grid=({g},1,1) block=({b},1,1) lds={l}")
    t.append('.amdgcn_target "amdgcn-amd-amdhsa--gfx950"')
    t.append(".text")
    for k, nv, na in kernels:
        t.append(kernel_text(k, nv, na))
    t.append('.section .rodata,"a"')
    for k, nv, na in kernels:
        t.append(".p2align 6")
        t.append(descriptor(k.name, nv, na))
    open(out, "w").write("\n".join(t))
    return L

if __name__ == "__main__":
    out = sys.argv[1] if len(sys.argv) > 1 else "interleave_layers__mha_block__dense_activation_silu__prompt.s"
    build(out)
    print("written", out, "ws used", WS_USED)
```

```python
from common import *
from k_gemm1 import mfma, wave_setup, offm

def make_attn(name):
    k = begin(name)
    exit_if_ge(k, 2, 256)
    load_ptr(k, 4, 8)
    vL, vL16, vK, vKe, vV, vT, vH, vN = 1, 2, 3, 4, 5, 6, 7, 8
    QM_, QE_ = 12, 16
    SS = 20
    OO = 52
    PP = 68
    KM = 76
    KE = 84
    VV = 92
    TM = 108
    wave_setup(k, vL, 20)
    k.I("v_lshlrev_b32", v(vL16), 4, v(vL))
    k.I("v_lshrrev_b32", v(vH), 5, v(vL))
    k.I("v_and_b32", v(vN), 31, v(vL))
    k.I("s_and_b32", s(21), s(2), 7)
    k.I("s_lshr_b32", s(22), s(2), 3)
    k.I("s_lshl_b32", s(23), s(21), 2)
    k.I("s_and_b32", s(24), s(22), 3)
    k.I("s_add_u32", s(23), s(23), s(24))
    k.I("s_lshr_b32", s(24), s(22), 2)
    k.I("s_lshl_b32", s(25), s(24), 3)
    k.I("s_add_u32", s(25), s(25), s(20))
    k.wait_all(vm=False)
    make_srd(k, SRD_WS, 4, WS_SIZE)
    stamp(k, 0)
    def loader():
        k.I("s_mul_i32", s(30), s(23), KV_HEAD)
        k.I("s_add_u32", s(30), s(30), off["KV"])
        k.I("s_mov_b32", s(31), 0)
        def chunk():
            for g0 in range(0, 19, 4):
                k.I("s_mov_b32", "m0", s(31))
                n = min(4, 19 - g0)
                for j in range(n):
                    k.I("buffer_load_dwordx4", v(vL16), s(SRD_WS, 4), s(30), mods=offm(j * 1024, "lds"))
                k.I("s_add_u32", s(30), s(30), n * 1024)
                k.I("s_add_u32", s(31), s(31), n * 1024)
        chunk(); chunk(); chunk()
        k.I("s_waitcnt", "vmcnt(38)")
        k.I("s_barrier")
        for c in range(3, 8): chunk()
        k.I("s_waitcnt", "vmcnt(0)")
        k.I("s_barrier")
        k.I("s_cmp_eq_u32", s(18), 0)
        k.I("s_cbranch_scc1", k.endlabel)
        SCR = 8 * KV_CHUNK
        k.I("s_load_dwordx4", s(44, 4), s(0, 2), 32)
        k.wait_all(vm=False)
        make_srd(k, 48, 44, D * F * 2)
        make_srd(k, 52, 46, D * F * 2)
        vO1, vO2, vTr, vX = 20, 21, 22, 23
        k.I("v_lshrrev_b32", v(vX), 3, v(vL))
        k.I("v_and_b32", v(vO2), 7, v(vL))
        k.I("v_lshlrev_b32", v(vO2), 4, v(vO2))
        k.I("v_mul_u32_u24", v(vO1), 9216, v(vX))
        k.I("v_add_u32", v(vO1), v(vO1), v(vO2))
        k.I("v_mul_u32_u24", v(vX), 1152, v(vX))
        k.I("v_add_u32", v(vO2), v(vO2), v(vX))
        k.I("v_and_b32", v(vX), 3, v(vL))
        k.I("v_and_b32", v(vTr), 1, v(vX))
        k.I("v_lshlrev_b32", v(vTr), 1, v(vTr))
        k.I("v_lshrrev_b32", v(vX), 1, v(vX))
        k.I("v_or_b32", v(vTr), v(vTr), v(vX))
        k.I("v_lshlrev_b32", v(vTr), 3, v(vTr))
        k.I("v_bfe_u32", v(vX), v(vL), 4, 1)
        k.I("v_lshl_add_u32", v(vTr), v(vX), 5, v(vTr))
        k.I("v_bfe_u32", v(vX), v(vL), 2, 2)
        k.I("v_lshl_add_u32", v(vX), v(vH), 3, v(vX))
        k.I("v_lshl_add_u32", v(vTr), v(vX), 7, v(vTr))
        k.I("v_add_u32", v(vTr), SCR, v(vTr))
        def issue():
            Lw2 = k.newlabel("BW2"); Ld = k.newlabel("BD")
            k.I("s_cmp_ge_u32", s(32), 1296); k.I("s_cbranch_scc1", Lw2)
            k.I("s_mul_i32", s(34), s(32), 58255); k.I("s_lshr_b32", s(34), s(34), 22)
            k.I("s_mul_i32", s(35), s(34), 72); k.I("s_sub_u32", s(35), s(32), s(35))
            k.I("s_mul_i32", s(40), s(34), 32 * 9216); k.I("s_lshl_b32", s(41), s(35), 7); k.I("s_add_u32", s(40), s(40), s(41))
            k.I("s_add_u32", s(41), s(33), SCR)
            for i in range(4):
                k.I("s_mov_b32", "m0", s(41))
                k.I("buffer_load_dwordx4", v(vO1), s(48, 4), s(40), mods="offen lds")
                k.I("s_add_u32", s(40), s(40), 8 * 9216); k.I("s_add_u32", s(41), s(41), 1024)
            k.I("s_mul_i32", s(56), s(35), 2 * 36 * 1024); k.I("s_lshl_b32", s(41), s(34), 11); k.I("s_add_u32", s(56), s(56), s(41))
            k.I("s_add_u32", s(56), s(56), off["W1"])
            k.I("s_mov_b32", s(57), 36 * 1024); k.I("s_mov_b32", s(58), 1024)
            k.I("s_branch", Ld)
            k.label(Lw2)
            k.I("s_sub_u32", s(42), s(32), 1296)
            k.I("s_mul_i32", s(34), s(42), 7282); k.I("s_lshr_b32", s(34), s(34), 16)
            k.I("s_mul_i32", s(35), s(34), 9); k.I("s_sub_u32", s(35), s(42), s(35))
            k.I("s_mul_i32", s(40), s(34), 32 * 1152); k.I("s_lshl_b32", s(41), s(35), 7); k.I("s_add_u32", s(40), s(40), s(41))
            k.I("s_add_u32", s(41), s(33), SCR)
            for i in range(4):
                k.I("s_mov_b32", "m0", s(41))
                k.I("buffer_load_dwordx4", v(vO2), s(52, 4), s(40), mods="offen lds")
                k.I("s_add_u32", s(40), s(40), 8 * 1152); k.I("s_add_u32", s(41), s(41), 1024)
            k.I("s_mul_i32", s(41), s(35), 21846); k.I("s_lshr_b32", s(41), s(41), 16)
            k.I("s_mul_i32", s(56), s(41), 288 * 6144)
            k.I("s_mul_i32", s(41), s(41), 3); k.I("s_sub_u32", s(41), s(35), s(41)); k.I("s_lshl_b32", s(41), s(41), 11)
            k.I("s_add_u32", s(56), s(56), s(41))
            k.I("s_mul_i32", s(41), s(34), 2 * 6144); k.I("s_add_u32", s(56), s(56), s(41))
            k.I("s_add_u32", s(56), s(56), off["W2"])
            k.I("s_mov_b32", s(57), 1024); k.I("s_mov_b32", s(58), 6144)
            k.label(Ld)
        k.I("s_mov_b32", s(32), s(2))
        k.I("s_mov_b32", s(33), 0)
        issue()
        Lp = k.newlabel("BGL"); Lend = k.newlabel("BGE"); Llast = k.newlabel("BGX")
        k.label(Lp)
        k.I("s_mov_b32", s(60), s(56)); k.I("s_mov_b32", s(61), s(57)); k.I("s_mov_b32", s(62), s(58)); k.I("s_mov_b32", s(59), s(33))
        k.I("s_add_u32", s(32), s(32), 256)
        k.I("s_xor_b32", s(33), s(33), 4096)
        k.I("s_cmp_ge_u32", s(32), 2592)
        k.I("s_cselect_b32", s(63), 1, 0)
        k.I("s_cbranch_scc1", Llast)
        issue()
        k.I("s_waitcnt", "vmcnt(4)")
        Lgo = k.newlabel("BGG")
        k.I("s_branch", Lgo)
        k.label(Llast)
        k.I("s_waitcnt", "vmcnt(0)")
        k.label(Lgo)
        k.I("v_add_u32", v(vX), s(59), v(vTr))
        for f in range(4):
            for jj in range(2):
                k.I("ds_read_b64_tr_b16", v(24 + 4 * f + 2 * jj, 2), v(vX), mods=f"offset:{(f >> 1) * 64 + (f & 1) * 2048 + jj * 512}")
        k.I("s_waitcnt", "lgkmcnt(0)")
        for f in range(4):
            k.I("s_mul_i32", s(40), s(61), f >> 1); k.I("s_mul_i32", s(41), s(62), f & 1)
            k.I("s_add_u32", s(40), s(40), s(41)); k.I("s_add_u32", s(40), s(40), s(60))
            k.I("buffer_store_dwordx4", v(24 + 4 * f, 4), v(vL16), s(SRD_WS, 4), s(40), mods="offen")
        k.I("s_cmp_eq_u32", s(63), 0)
        k.I("s_cbranch_scc1", Lp)
        k.I("s_endpgm")
    k.I("s_cmp_lt_u32", s(20), 8)
    k.if_scc("s_cbranch_scc1", loader)
    k.I("s_lshl_b32", s(26), s(23), 6)
    k.I("s_add_u32", s(26), s(26), s(25))
    k.I("s_lshl_b32", s(26), s(26), 10)
    k.I("s_add_u32", s(26), s(26), off["QM"])
    k.I("buffer_load_dwordx4", v(QM_, 4), v(vL16), s(SRD_WS, 4), s(26), mods="offen")
    k.I("s_lshl_b32", s(27), s(23), 13)
    k.I("s_lshl_b32", s(28), s(25), 7)
    k.I("s_add_u32", s(27), s(27), s(28))
    k.I("s_add_u32", s(27), s(27), off["QE"])
    k.I("v_lshlrev_b32", v(vT), 2, v(vN))
    k.I("buffer_load_dword", v(QE_), v(vT), s(SRD_WS, 4), s(27), mods="offen")
    k.I("v_mov_b32", v(vK), v(vL16))
    k.I("v_lshlrev_b32", v(vKe), 2, v(vN))
    k.I("v_add_u32", v(vKe), 8192, v(vKe))
    k.I("v_subrev_u32", v(vT), 16, v(vN))
    k.I("v_cmp_gt_u32", "vcc", 20, v(vN))
    k.I("v_cndmask_b32", v(vT), v(vT), v(vN), "vcc")
    k.I("v_lshlrev_b32", v(vT), 4, v(vT))
    k.I("v_mul_u32_u24", v(vV), 320, v(vH))
    k.I("v_add_u32", v(vV), v(vV), v(vT))
    k.I("v_add_u32", v(vV), 9216, v(vV))
    for i in range(1, 4):
        k.I("v_mov_b32", v(QE_ + i), 0)
        k.I("v_mov_b32", v(KE + i), 0)
        k.I("v_mov_b32", v(KE + 4 + i), 0)
    for i in range(16): k.I("v_mov_b32", v(OO + i), 0)
    for i in range(4):
        k.I("v_mov_b32", v(PP + 4 + i), 0)
        k.I("v_mov_b32", v(VV + 8 + 4 + i), 0)
    k.I("v_cmp_gt_u32", "vcc", 32, v(vL))
    k.I("v_cndmask_b32", v(QE_), 0, v(QE_), "vcc")
    def ldK(t):
        b = t & 1
        c, tt = divmod(t, 8)
        k.I("ds_read_b128", v(KM + 4 * b, 4), v(vK), mods=f"offset:{c * KV_CHUNK + tt * 1024}")
        k.I("ds_read_b32", v(KE + 4 * b), v(vKe), mods=f"offset:{c * KV_CHUNK + tt * 128}")
    def ldV(t, u):
        b = t & 1
        c, tt = divmod(t, 8)
        k.I("ds_read_b128", v(VV + 8 * b + 4 * u, 4), v(vV), mods=f"offset:{c * KV_CHUNK + (2 * tt + u) * 640}")
    def qk(t, which):
        b = t & 1
        if which == 0: mfma(k, SS + 16 * b, v(KM + 4 * b, 4), v(QM_, 4), True)
        else: mfma(k, SS + 16 * b, v(KE + 4 * b, 4), v(QE_, 4))
    stamp(k, 1)
    k.I("s_barrier")
    stamp(k, 2)
    ldK(0); ldV(0, 0); ldK(1)
    qk(0, 0); qk(0, 1)
    def tile(t):
        b = t & 1
        Sb = SS + 16 * b
        ex = lambda i: k.I("v_exp_f32", v(Sb + i), v(Sb + i))
        cv = lambda i: k.I("v_cvt_pk_bf16_f32", v(PP + i), v(Sb + 2 * i), v(Sb + 2 * i + 1))
        if t == 6:
            k.I("s_cmp_lg_u32", s(41), 8)
            k.if_scc("s_cbranch_scc1", lambda: k.I("s_barrier"))
        qk(t + 1, 0)
        ldV(t, 1)
        for i in range(0, 4): ex(i)
        mfma(k, OO, v(VV + 8 * (1 - b) + 4, 4), v(PP + 4, 4))
        ldK(t + 2)
        for i in range(4, 8): ex(i)
        cv(0); cv(1)
        qk(t + 1, 1)
        ldV(t + 1, 0)
        cv(2); cv(3)
        for i in range(8, 12): ex(i)
        mfma(k, OO, v(VV + 8 * b, 4), v(PP, 4))
        for i in range(12, 16): ex(i)
        for i in range(4, 8): cv(i)
    def body():
        for t in range(8): tile(t)
        k.I("v_add_u32", v(vK), KV_CHUNK, v(vK))
        k.I("v_add_u32", v(vKe), KV_CHUNK, v(vKe))
        k.I("v_add_u32", v(vV), KV_CHUNK, v(vV))
    k.maxit = 3
    k.loop(8, 41, body)
    mfma(k, OO, v(VV + 8 + 4, 4), v(PP + 4, 4))
    stamp(k, 3)
    vLs, vInv = TM, TM + 1
    def finish_rows():
        k.I("v_mov_b32", v(vLs), v(OO + 10))
        k.I("v_mov_b32", v(vInv), v(OO + 10))
        k.I("v_permlane32_swap_b32", v(vLs), v(vInv))
    finish_rows()
    k.I("v_cmp_le_f32", "vcc", hexf(2.0 ** -40), v(vLs))
    k.I("v_cmp_ge_f32", s(44, 2), hexf(2.0 ** 60) if False else v(vLs), v(vLs)) if False else None
    k.I("s_mov_b32", s(46), hexf(2.0 ** 60))
    k.I("v_cmp_le_f32", s(44, 2), v(vLs), s(46))
    k.I("s_and_b64", "vcc", "vcc", s(44, 2))
    k.I("v_max3_f32", v(TM + 2), "abs(" + v(OO) + ")", "abs(" + v(OO + 1) + ")", "abs(" + v(OO + 2) + ")")
    k.I("v_max3_f32", v(TM + 2), "abs(" + v(OO + 3) + ")", "abs(" + v(OO + 4) + ")", v(TM + 2))
    k.I("v_max3_f32", v(TM + 2), "abs(" + v(OO + 5) + ")", "abs(" + v(OO + 6) + ")", v(TM + 2))
    k.I("v_max3_f32", v(TM + 2), "abs(" + v(OO + 7) + ")", v(TM + 2), v(TM + 2))
    k.I("v_max3_f32", v(TM + 2), "abs(" + v(OO + 8) + ")", "abs(" + v(OO + 9) + ")", v(TM + 2))
    k.I("s_mov_b32", s(46), hexf(2.0 ** 120))
    k.I("v_cmp_le_f32", s(44, 2), v(TM + 2), s(46))
    k.I("s_and_b64", "vcc", "vcc", s(44, 2))
    k.I("s_cmp_eq_u64", "vcc", -1)
    def slow():
        vM, vMn, vAl = TM + 3, TM + 4, TM + 5
        k.I("v_mov_b32", v(vM), "0xff800000")
        for i in range(16): k.I("v_mov_b32", v(OO + i), 0)
        k.I("v_subrev_u32", v(vK), 8 * KV_CHUNK, v(vK))
        k.I("v_subrev_u32", v(vKe), 8 * KV_CHUNK, v(vKe))
        k.I("v_subrev_u32", v(vV), 8 * KV_CHUNK, v(vV))
        def sbody():
            for t in range(8):
                ldK(2 * (t // 2) * 0 + t) if False else None
                k.I("ds_read_b128", v(KM, 4), v(vK), mods=f"offset:{t * 1024}")
                k.I("ds_read_b32", v(KE), v(vKe), mods=f"offset:{t * 128}")
                for u in range(2):
                    k.I("ds_read_b128", v(VV + 4 * u, 4), v(vV), mods=f"offset:{(2 * t + u) * 640}")
                mfma(k, SS, v(KM, 4), v(QM_, 4), True)
                mfma(k, SS, v(KE, 4), v(QE_, 4))
                k.I("v_max3_f32", v(vMn), v(SS), v(SS + 1), v(vM))
                for i in range(2, 16, 2): k.I("v_max3_f32", v(vMn), v(SS + i), v(SS + i + 1), v(vMn))
                k.I("v_mov_b32", v(vAl), v(vMn))
                k.I("v_permlane32_swap_b32", v(vAl), v(vMn))
                k.I("v_max_f32", v(vMn), v(vMn), v(vAl))
                k.I("v_sub_f32", v(vAl), v(vM), v(vMn))
                k.I("v_exp_f32", v(vAl), v(vAl))
                k.I("v_mov_b32", v(vM), v(vMn))
                for i in range(16):
                    k.I("v_sub_f32", v(SS + i), v(SS + i), v(vMn))
                    k.I("v_exp_f32", v(SS + i), v(SS + i))
                    k.I("v_mul_f32", v(OO + i), v(OO + i), v(vAl))
                for i in range(8): k.I("v_cvt_pk_bf16_f32", v(PP + i), v(SS + 2 * i), v(SS + 2 * i + 1))
                mfma(k, OO, v(VV, 4), v(PP, 4))
                mfma(k, OO, v(VV + 4, 4), v(PP + 4, 4))
            k.I("v_add_u32", v(vK), KV_CHUNK, v(vK))
            k.I("v_add_u32", v(vKe), KV_CHUNK, v(vKe))
            k.I("v_add_u32", v(vV), KV_CHUNK, v(vV))
        k.loop(8, 41, sbody)
        finish_rows()
    k.if_scc("s_cbranch_scc1", slow)
    k.I("v_rcp_f32", v(vInv), v(vLs))
    for i in range(10): k.I("v_mul_f32", v(OO + i), v(OO + i), v(vInv))
    for i in range(5): k.I("v_cvt_pk_bf16_f32", v(PP + i), v(OO + 2 * i), v(OO + 2 * i + 1))
    k.I("s_mul_i32", s(26), s(25), 36)
    k.I("s_add_u32", s(27), s(26), s(23))
    k.I("s_lshl_b32", s(27), s(27), 10)
    k.I("s_add_u32", s(27), s(27), off["OM"])
    k.I("buffer_store_dwordx4", v(PP, 4), v(vL16), s(SRD_WS, 4), s(27), mods="offen")
    k.I("s_lshr_b32", s(27), s(23), 3)
    k.I("s_add_u32", s(27), s(27), s(26))
    k.I("s_add_u32", s(27), s(27), 32)
    k.I("s_lshl_b32", s(27), s(27), 10)
    k.I("s_bfe_u32", s(28), s(23), 0x10002)
    k.I("s_lshl_b32", s(28), s(28), 9)
    k.I("s_add_u32", s(27), s(27), s(28))
    k.I("s_and_b32", s(28), s(23), 3)
    k.I("s_lshl_b32", s(28), s(28), 2)
    k.I("s_add_u32", s(27), s(27), s(28))
    k.I("s_add_u32", s(27), s(27), off["OM"])
    k.I("v_lshlrev_b32", v(vT), 4, v(vN))
    k.I("s_mov_b64", "exec", "0xffffffff")
    k.I("buffer_store_dword", v(PP + 4), v(vT), s(SRD_WS, 4), s(27), mods="offen")
    k.I("s_mov_b64", "exec", -1)
    stamp(k, 4)
    k.wait_all()
    stamp(k, 5)
    stamp_out(k, 6)
    return finish(k), dict(nv=120, na=0)
```

```python
from common import *
import os
from k_gemm1 import mfma, wave_setup, offm, dma

def interleave(k, main, fill, start=0, end=None):
    n = len(main)
    if end is None: end = n
    slots = end - start
    pos = 0
    for g in range(n):
        for f in main[g]: f()
        if start <= g < end:
            tgt = (len(fill) * (g - start + 1) + slots - 1) // slots
            while pos < min(tgt, len(fill)):
                fill[pos](); pos += 1
    while pos < len(fill):
        fill[pos](); pos += 1

def make_ffn1(name):
    from k_t2 import role_setup
    k = begin(name)
    exit_if_ge(k, 2, 256)
    load_ptr(k, 4, 8)
    vL, vL16, vA, vR, vM, vT = 1, 2, 3, 4, 6, 8
    XB, ACC, FR, TM, P = 16, 160, 192, 228, 244
    PF = 6; NFR = 9; GW = 3
    XLA = 12
    TILE = 36 * 1024
    NSLOT = 4
    role_setup(k)
    k.I("s_and_b32", s(21), s(2), 7)
    k.I("s_lshr_b32", s(22), s(2), 3)
    k.I("s_and_b32", s(23), s(21), 3)
    k.I("s_lshl_b32", s(23), s(23), 2)
    k.I("s_and_b32", s(24), s(22), 3)
    k.I("s_add_u32", s(23), s(23), s(24))
    k.I("s_lshr_b32", s(24), s(21), 2)
    k.I("s_lshl_b32", s(24), s(24), 3)
    k.I("s_lshr_b32", s(25), s(22), 2)
    k.I("s_add_u32", s(24), s(24), s(25))
    k.I("s_lshl_b32", s(25), s(23), 2)
    k.I("s_add_u32", s(25), s(25), s(20))
    k.wait_all(vm=False)
    make_srd(k, SRD_WS, 4, WS_SIZE)
    make_srd(k, SRD_A, 4, WS_SIZE)
    stamp(k, 0)
    def loader():
        k.I("s_mul_i32", s(30), s(24), 9 * TILE)
        k.I("s_mul_i32", s(31), s(20), 9216)
        k.I("s_add_u32", s(30), s(30), s(31))
        k.I("s_add_u32", s(30), s(30), off["W1"])
        k.I("s_mov_b32", s(32), s(31))
        k.I("s_mov_b32", s(33), 0)
        def issue():
            for g0 in (0, 3, 6):
                k.I("s_add_u32", s(34), s(32), g0 * 1024)
                k.I("s_mov_b32", "m0", s(34))
                k.I("s_add_u32", s(35), s(30), g0 * 1024)
                for j in range(3):
                    k.I("buffer_load_dwordx4", v(vL16), s(SRD_A, 4), s(35), mods=offm(j * 1024, "lds"))
            k.I("s_add_u32", s(30), s(30), TILE)
            k.I("s_add_u32", s(32), s(32), TILE)
            k.I("s_sub_u32", s(34), s(32), NSLOT * TILE)
            k.I("s_cmp_ge_u32", s(32), NSLOT * TILE)
            k.I("s_cselect_b32", s(32), s(34), s(32))
            k.I("s_add_u32", s(33), s(33), 1)
            k.I("s_cmp_ge_u32", s(33), 9)
            k.I("s_cselect_b32", s(SRD_A + 2), 0, s(SRD_A + 2))
        issue()
        k.I("s_waitcnt", "vmcnt(0)")
        k.I("s_barrier")
        issue(); issue()
        def lb():
            k.I("s_waitcnt", "vmcnt(9)")
            k.I("s_barrier")
            issue()
        k.loop(9 if not (int(os.environ.get("F1X", "0")) & 2) else 1, 41, lb)
        k.I("s_endpgm")
    k.I("s_cmp_eq_u32", s(19), 0)
    k.if_scc("s_cbranch_scc1", loader)
    k.I("s_setprio", 1)
    k.I("s_mul_i32", s(26), s(25), 9 * 512)
    k.I("s_add_u32", s(26), s(26), off["ST"])
    k.I("v_lshlrev_b32", v(vT), 3, v(vL))
    for c in range(8):
        k.I("buffer_load_dwordx2", v(TM + 2 * c, 2), v(vT), s(SRD_WS, 4), s(26), mods=offm(c * 512))
    k.I("s_add_u32", s(27), s(26), 4096)
    k.I("buffer_load_dwordx2", v(P, 2), v(vT), s(SRD_WS, 4), s(27), mods="offen")
    k.I("s_mul_i32", s(36), s(25), 36 * 1024)
    k.I("s_add_u32", s(36), s(36), off["XF"])
    def ldx(st):
        k.I("buffer_load_dwordx4", v(XB + 4 * st, 4), v(vL16), s(SRD_WS, 4), s(36), mods=offm((st & 3) * 1024))
        if st & 3 == 3: k.I("s_add_u32", s(36), s(36), 4096)
    for st in range(XLA): ldx(st)
    stamp(k, 1)
    k.I("s_mul_i32", s(38), s(25), 288 * 1024)
    k.I("s_mul_i32", s(39), s(24), 18 * 1024)
    k.I("s_add_u32", s(38), s(38), s(39))
    k.I("s_add_u32", s(38), s(38), off["HF"])
    vS, vQ = vR, vR + 1
    k.I("v_add_f32", v(vS), v(TM), v(TM + 2))
    k.I("v_add_f32", v(vQ), v(TM + 1), v(TM + 3))
    for c in range(2, 8):
        k.I("v_add_f32", v(vS), v(vS), v(TM + 2 * c))
        k.I("v_add_f32", v(vQ), v(vQ), v(TM + 2 * c + 1))
    k.I("v_add_f32", v(vS), v(vS), v(P))
    k.I("v_add_f32", v(vQ), v(vQ), v(P + 1))
    for r in (vS, vQ):
        k.I("v_mov_b32", v(vT), v(r))
        k.I("v_permlane32_swap_b32", v(vT), v(r))
        k.I("v_add_f32", v(r), v(r), v(vT))
    k.I("v_mul_f32", v(vS), hexf(1.0 / D), v(vS))
    k.I("v_mul_f32", v(vQ), hexf(1.0 / D), v(vQ))
    k.I("v_fma_f32", v(vQ), "-" + v(vS), v(vS), v(vQ))
    k.I("v_max_f32", v(vQ), 0, v(vQ))
    k.I("v_add_f32", v(vQ), hexf(1e-5), v(vQ))
    k.I("v_rsq_f32", v(vQ), v(vQ))
    k.I("v_mul_f32", v(vQ), hexf(-LOG2E), v(vQ))
    k.I("v_mul_f32", v(vM), v(vS), v(vQ))
    k.I("v_sub_f32", v(vM), 0, v(vM))
    k.I("v_mov_b32", v(vR), v(vQ))
    def norm(st):
        x = XB + 4 * st
        for i in range(4):
            k.I("v_lshlrev_b32", v(TM + 2 * i), 16, v(x + i))
            k.I("v_and_b32", v(TM + 2 * i + 1), "0xffff0000", v(x + i))
        for i in range(4):
            k.I("v_pk_fma_f32", v(TM + 2 * i, 2), v(TM + 2 * i, 2), v(vR, 2), v(vM, 2), mods="op_sel_hi:[1,0,0]")
        for i in range(4):
            k.I("v_cvt_pk_bf16_f32", v(x + i), v(TM + 2 * i), v(TM + 2 * i + 1))
    k.I("s_mov_b32", s(40), 0)
    def rd(st_abs):
        fr = FR + 4 * (st_abs % NFR)
        k.I("ds_read_b128", v(fr, 4), v(vA), mods=f"offset:{(st_abs % KS) * 1024}")
    def next_slot():
        k.I("s_add_u32", s(40), s(40), TILE)
        k.I("s_cmp_ge_u32", s(40), NSLOT * TILE)
        k.I("s_cselect_b32", s(40), 0, s(40))
    def epi_ops(acc):
        ops = []
        for i in range(16 + 3):
            if i < 16: ops.append(lambda i=i: k.I("v_exp_f32", v(TM + i), v(acc + i)))
            if 0 <= i - 1 < 16: ops.append(lambda i=i - 1: k.I("v_add_f32", v(TM + i), 1.0, v(TM + i)))
            if 0 <= i - 2 < 16: ops.append(lambda i=i - 2: k.I("v_rcp_f32", v(TM + i), v(TM + i)))
            if 0 <= i - 3 < 16:
                j = i - 3
                ops.append(lambda j=j: k.I("v_mul_f32", v(TM + j), v(acc + j), v(TM + j)))
                if j & 1: ops.append(lambda j=j: k.I("v_cvt_pk_bf16_f32", v(P + j // 2), v(TM + j - 1), v(TM + j)))
        return ops
    def cost(f):
        return 1
    EXP = int(os.environ.get("F1X", "0"))
    def stores():
        if not (EXP & 1):
            k.I("buffer_store_dwordx4", v(P, 4), v(vL16), s(SRD_WS, 4), s(38), mods="offen")
            k.I("buffer_store_dwordx4", v(P + 4, 4), v(vL16), s(SRD_WS, 4), s(38), mods="offen offset:1024")
        k.I("s_add_u32", s(38), s(38), 2048)
    def tile(par, first):
        acc = ACC + 16 * par
        fill = [] if first or (EXP & 4) else epi_ops(ACC + 16 * (1 - par))
        ops = []
        if fill:
            probe = K("p")
            costs = []
            for f in fill:
                n0 = len(k.cur); f(); ins = k.cur.pop(); costs.append(8 if ins.is_trans() else 4)
            tot = sum(costs); G = int(os.environ.get('F1G', '26'))
        pos = 0; acc_c = 0
        for st in range(KS):
            if first:
                if st + XLA < KS: ldx(st + XLA)
                norm(st)
            nx = st + PF
            if nx == KS:
                if first or not (EXP & 2): k.I("s_barrier")
                k.I("v_add_u32", v(vA), s(40), v(vL16))
            if st % GW == 0 and not first:
                k.I("s_waitcnt", f"lgkmcnt({PF - GW})")
            mfma(k, acc, v(FR + 4 * (st % NFR), 4), v(XB + 4 * st, 4), st == 0)
            rd(nx)
            if st == 20: next_slot()
            if fill and st >= 2:
                tgt = tot * (st - 1) / G
                while pos < len(fill) and acc_c + costs[pos] / 2 <= tgt:
                    fill[pos](); acc_c += costs[pos]; pos += 1
                if st == G + 2:
                    while pos < len(fill): fill[pos](); pos += 1
                    stores()
    k.I("v_mov_b32", v(vA), v(vL16))
    k.I("s_barrier")
    stamp(k, 2)
    for st in range(PF): rd(st)
    tile(0, True)
    stamp(k, 3)
    def body():
        tile(1, False)
        tile(0, False)
    k.loop(4, 41, body)
    stamp(k, 4)
    for f in epi_ops(ACC): f()
    stores()
    for i in range(5, 9): stamp(k, i)
    if STAMP: k.wait_all()
    stamp(k, 9)
    stamp_out(k, 10)
    return finish(k), dict(nv=252, na=0)

def make_ffn2(name):
    from k_t2 import T2, role_setup
    k = begin(name)
    exit_if_ge(k, 2, 240)
    load_ptr(k, 4, 8)
    vL, vL16 = 1, 2
    ACC, FR, P = 16, 112, 168
    NT = 6
    role_setup(k)
    k.I("s_and_b32", s(21), s(2), 7)
    k.I("s_lshr_b32", s(22), s(2), 3)
    k.I("s_mul_i32", s(23), s(22), 21846)
    k.I("s_lshr_b32", s(23), s(23), 16)
    k.I("s_mul_i32", s(24), s(23), 3)
    k.I("s_sub_u32", s(24), s(22), s(24))
    k.I("s_mul_i32", s(21), s(21), 10)
    k.I("s_add_u32", s(23), s(23), s(21))
    k.I("s_lshr_b32", s(26), s(23), 4)
    k.I("s_and_b32", s(23), s(23), 15)
    k.I("s_lshl_b32", s(25), s(23), 2)
    k.I("s_add_u32", s(25), s(25), s(20))
    k.I("s_mul_i32", s(27), s(26), 58)
    k.I("s_cmp_eq_u32", s(26), 4)
    k.I("s_cselect_b32", s(28), 28, 29)
    k.wait_all(vm=False)
    make_srd(k, SRD_WS, 4, WS_SIZE)
    make_srd(k, SRD_A, 4, WS_SIZE)
    k.I("s_mul_i32", s(30), s(24), 288 * 6144)
    k.I("s_mul_i32", s(31), s(27), 6144)
    k.I("s_add_u32", s(30), s(30), s(31))
    k.I("s_add_u32", s(30), s(30), off["W2"])
    k.I("s_mul_i32", s(32), s(25), 288)
    k.I("s_add_u32", s(32), s(32), s(27))
    k.I("s_lshl_b32", s(32), s(32), 10)
    k.I("s_add_u32", s(32), s(32), off["HF"])
    FIX = int(os.environ.get("FFN2_FIX", "0"))
    if FIX & 1:
        k.I("s_lshl_b32", s(32), s(20), 18); k.I("s_add_u32", s(32), s(32), off["HF"])
    if FIX & 2:
        k.I("s_mov_b32", s(30), off["W2"])
    g = T2(k, NT, int(os.environ.get("FFN2_NB", "7")), ACC, FR)
    stamp(k, 0)
    k.I("s_cmp_eq_u32", s(19), 0)
    k.if_scc("s_cbranch_scc1", g.loader)
    k.I("s_setprio", 1)
    stamp(k, 1)
    stamp(k, 2)
    g.compute(False)
    stamp(k, 3)
    k.I("s_mul_i32", s(43), s(26), XF_BYTES)
    k.I("s_mul_i32", s(44), s(25), 36 * 1024)
    k.I("s_add_u32", s(43), s(43), s(44))
    k.I("s_mul_i32", s(44), s(24), 12 * 1024)
    k.I("s_add_u32", s(43), s(43), s(44))
    k.I("s_add_u32", s(43), s(43), off["PART"])
    for t in range(NT):
        pb = P + 8 * (t & 1)
        for i in range(8):
            k.I("v_cvt_pk_bf16_f32", v(pb + i), v(ACC + 16 * t + 2 * i), v(ACC + 16 * t + 2 * i + 1))
        k.I("buffer_store_dwordx4", v(pb, 4), v(vL16), s(SRD_WS, 4), s(43), mods="offen")
        k.I("buffer_store_dwordx4", v(pb + 4, 4), v(vL16), s(SRD_WS, 4), s(43), mods="offen offset:1024")
        k.I("s_add_u32", s(43), s(43), 2048)
    stamp(k, 4)
    if STAMP: k.wait_all()
    stamp(k, 5)
    stamp_out(k, 6)
    return finish(k), dict(nv=184, na=0)
```

```python
from common import *

NLN2 = -0.6931471805599453
NPART = 5
def red_body(k, mode, wg=2, G=1):
    NP = 72 // G; NW = 9 // G
    vT, vN, vP, vOff, vRow = 0, 1, 2, 3, 4
    k.I("v_and_b32", v(vN), 7, v(vT))
    k.I("v_lshrrev_b32", v(vP), 3, v(vT))
    k.I("s_lshr_b32", s(20), s(wg), 2)
    k.I("s_and_b32", s(21), s(wg), 3)
    k.I("s_lshl_b32", s(21), s(21), 3)
    k.I("s_mul_i32", s(22), s(20), 36864)
    k.I("s_lshl_b32", s(23), s(21), 4)
    k.I("s_add_u32", s(22), s(22), s(23))
    k.I("v_lshlrev_b32", v(vOff), 9, v(vP))
    k.I("v_lshl_add_u32", v(vOff), v(vN), 4, v(vOff))
    if mode in (0, 2):
        k.I("s_lshl_b32", s(24), s(wg), 3)
        k.I("v_add_u32", v(vRow), s(24), v(vN))
        k.I("v_mul_u32_u24", v(vRow), 1152, v(vRow))
        k.I("v_lshl_add_u32", v(vRow), v(vP), 4, v(vRow))
    X = 8
    P = X + 4 * G
    A = P + (4 * G * NPART if mode else 0)
    T = A + 8 * G
    def xf_store(base):
        k.I("s_add_u32", s(25), s(22), base)
        for g in range(G):
            if g: k.I("s_add_u32", s(25), s(25), NP * 512)
            k.I("buffer_store_dwordx4", v(X + 4 * g, 4), v(vOff), s(SRD_WS, 4), s(25), mods="offen")
    def unpack(dst, src, n):
        for i in range(n):
            k.I("v_lshlrev_b32", v(dst + 2 * i), 16, v(src + i))
            k.I("v_and_b32", v(dst + 2 * i + 1), "0xffff0000", v(src + i))
    if mode == 0:
        for g in range(G):
            k.I("buffer_load_dwordx4", v(X + 4 * g, 4), v(vRow), s(SRD_A, 4), 0, mods=f"offen offset:{g * NP * 16}" if g else "offen")
        unpack(A, X, 4 * G)
    else:
        assert G == 1
        for q in range(NPART):
            k.I("s_add_u32", s(25), s(22), off["PART"] + q * XF_BYTES)
            k.I("buffer_load_dwordx4", v(P + q * 4, 4), v(vOff), s(SRD_WS, 4), s(25), mods="offen")
        k.I("s_add_u32", s(25), s(22), off["XF"])
        k.I("buffer_load_dwordx4", v(X, 4), v(vOff), s(SRD_WS, 4), s(25), mods="offen")
        for q in range(NPART):
            unpack(A if q == 0 else T, P + q * 4, 4)
            if q:
                for i in range(8): k.I("v_add_f32", v(A + i), v(A + i), v(T + i))
        k.I("s_mov_b32", s(26), hexf(NLN2))
        unpack(T, X, 4)
        for i in range(8): k.I("v_fma_f32", v(A + i), v(A + i), s(26), v(T + i))
        for i in range(4): k.I("v_cvt_pk_bf16_f32", v(X + i), v(A + 2 * i), v(A + 2 * i + 1))
        if mode == 2:
            k.I("buffer_store_dwordx4", v(X, 4), v(vRow), s(SRD_A, 4), 0, mods="offen plain")
            return
        unpack(A, X, 4)
    xf_store(off["XF"])
    vS, vQ = T + 8, T + 9
    k.I("v_add_f32", v(vS), v(A), v(A + 1))
    k.I("v_mul_f32", v(vQ), v(A), v(A))
    k.I("v_fmac_f32", v(vQ), v(A + 1), v(A + 1))
    for i in range(2, 8 * G):
        k.I("v_add_f32", v(vS), v(vS), v(A + i))
        k.I("v_fmac_f32", v(vQ), v(A + i), v(A + i))
    for r in (vS, vQ):
        k.I("v_add_f32_dpp", v(r), v(r), v(r), mods="row_ror:8 row_mask:0xf bank_mask:0xf")
    for r in (vS, vQ):
        k.I("v_mov_b32", v(T), v(r))
        k.I("v_permlane16_swap_b32", v(T), v(r))
        k.I("v_add_f32", v(r), v(r), v(T))
    for r in (vS, vQ):
        k.I("v_mov_b32", v(T), v(r))
        k.I("v_permlane32_swap_b32", v(T), v(r))
        k.I("v_add_f32", v(r), v(r), v(T))
    k.I("v_lshrrev_b32", v(T), 6, v(vT))
    k.I("v_lshlrev_b32", v(T), 3, v(T))
    k.I("v_mul_u32_u24", v(T + 1), 80, v(vN))
    k.I("v_add_u32", v(T), v(T), v(T + 1))
    k.I("ds_write_b64", v(T), v(vS, 2))
    k.I("s_barrier")
    for w in range(NW):
        k.I("ds_read_b64", v(T + 10 + 2 * w, 2), v(T + 1), mods=f"offset:{8 * w}")
    k.I("v_add_f32", v(vS), v(T + 10), v(T + 12))
    k.I("v_add_f32", v(vQ), v(T + 11), v(T + 13))
    for w in range(2, NW):
        k.I("v_add_f32", v(vS), v(vS), v(T + 10 + 2 * w))
        k.I("v_add_f32", v(vQ), v(vQ), v(T + 11 + 2 * w))
    k.I("v_mul_f32", v(vS), hexf(1.0 / D), v(vS))
    k.I("v_mul_f32", v(vQ), hexf(1.0 / D), v(vQ))
    k.I("v_fma_f32", v(vQ), "-" + v(vS), v(vS), v(vQ))
    k.I("v_max_f32", v(vQ), 0, v(vQ))
    k.I("v_add_f32", v(vQ), hexf(1e-5), v(vQ))
    k.I("v_rsq_f32", v(vQ), v(vQ))
    k.I("v_mul_f32", v(vS), v(vS), v(vQ))
    for i in range(8 * G):
        k.I("v_fma_f32", v(A + i), v(A + i), v(vQ), "-" + v(vS))
    for i in range(4 * G):
        k.I("v_cvt_pk_bf16_f32", v(X + i), v(A + 2 * i), v(A + 2 * i + 1))
    xf_store(off["XN"])

def make_red(name, mode):
    k = begin(name)
    exit_if_ge(k, 2, 256)
    load_ptr(k, 4, 8)
    load_ptr(k, 6, 6)
    k.wait_all(vm=False)
    make_srd(k, SRD_WS, 4, WS_SIZE)
    make_srd(k, SRD_A, 6, S * D * 2)
    red_body(k, mode)
    return finish(k)

def make_prep(name):
    NTR = 102; NX = 256; NG = 72
    k = begin(name)
    exit_if_ge(k, 2, NTR + NX + NG + 32)
    k.I("s_load_dwordx4", s(36, 4), s(0, 2), 0)
    k.I("s_load_dwordx2", s(40, 2), s(0, 2), 16)
    k.I("s_load_dwordx4", s(44, 4), s(0, 2), 32)
    load_ptr(k, 4, 8)
    vL, vM, vH, vCol, vOff, vT, vPi, vA = 1, 2, 3, 4, 5, 6, 7, 8
    k.I("v_and_b32", v(vL), 63, v(0))
    k.I("v_and_b32", v(vM), 31, v(0))
    k.I("v_bfe_u32", v(vH), v(0), 5, 1)
    k.I("v_lshrrev_b32", v(vT), 6, v(0))
    k.I("v_readfirstlane_b32", s(20), v(vT))
    k.wait_all(vm=False)
    make_srd(k, SRD_WS, 4, WS_SIZE)
    def rt(i):
        if STAMP:
            k.I("s_memrealtime", s(64 + 2 * i, 2)); k.I("s_waitcnt", "lgkmcnt(0)")
    def rt_out():
        if not STAMP: return
        k.I("s_waitcnt", "vmcnt(0)")
        rt(2)
        k.I("s_lshl_b32", s(61), s(2), 4)
        k.I("s_add_u32", s(61), s(61), WS_USED + 65536)
        k.I("v_mov_b32", v(60), 0)
        for i in range(3):
            k.I("v_mov_b32", v(61), s(64 + 2 * i))
            k.I("buffer_store_dword", v(61), v(60), s(SRD_WS, 4), s(61), mods=f"offen offset:{4 * i}")
    rt(0)
    Lx = k.newlabel("X"); Lg = k.newlabel("G"); Lo = k.newlabel("O")
    k.I("s_cmp_ge_u32", s(2), NTR + NX + NG); k.I("s_cbranch_scc1", Lo)
    k.I("s_cmp_ge_u32", s(2), NTR + NX); k.I("s_cbranch_scc1", Lg)
    k.I("s_cmp_ge_u32", s(2), NTR); k.I("s_cbranch_scc1", Lx)
    Lw2 = k.newlabel("TW2"); Lv = k.newlabel("TV"); Lqk = k.newlabel("TQK"); Lwo = k.newlabel("TWO"); Lgo = k.newlabel("TGO")
    def div3(dst_q, dst_r, src):
        k.I("s_mul_i32", s(dst_q), s(src), 21846)
        k.I("s_lshr_b32", s(dst_q), s(dst_q), 16)
        k.I("s_mul_i32", s(dst_r), s(dst_q), 3)
        k.I("s_sub_u32", s(dst_r), s(src), s(dst_r))
    k.I("s_mov_b32", s(56), 0); k.I("s_mov_b32", s(57), 0); k.I("s_mov_b32", s(58), 12); k.I("s_mov_b32", s(55), 1)
    k.I("s_cmp_ge_u32", s(2), 75); k.I("s_cbranch_scc1", Lwo)
    k.I("s_cmp_ge_u32", s(2), 27); k.I("s_cbranch_scc1", Lqk)
    k.I("s_branch", Lv)
    def qkv_dst(sG, sThird):
        k.I("s_lshr_b32", s(24), s(sG), 2)
        k.I("s_mul_i32", s(52), s(24), 4 * 36 * 1024)
        k.I("s_and_b32", s(25), s(sG), 3); k.I("s_lshl_b32", s(25), s(25), 10)
        k.I("s_add_u32", s(52), s(52), s(25))
        k.I("s_mul_i32", s(24), s(sThird), 12 * 4096)
        k.I("s_add_u32", s(52), s(52), s(24))
        k.I("s_add_u32", s(52), s(52), off["WQKV"])
        k.I("s_mov_b32", s(53), 1024)
        k.I("s_mov_b32", s(54), 4096)
        k.I("s_mov_b32", s(55), 0)
        make_srd(k, SRD_A, 38, D * 3 * D * 2)
        k.I("s_mov_b32", s(50), 3456)
        k.I("s_mul_i32", s(51), s(sThird), 192 * 3456)
    k.label(Lv)
    k.I("s_mov_b32", s(21), s(2))
    div3(22, 23, 21)
    k.I("s_lshl_b32", s(26), s(22), 1); k.I("s_add_u32", s(26), s(26), 36)
    qkv_dst(26, 23)
    k.I("s_lshl_b32", s(24), s(22), 7)
    k.I("s_add_u32", s(51), s(51), s(24))
    k.I("s_add_u32", s(51), s(51), 2304)
    k.I("s_branch", Lgo)
    k.label(Lqk)
    k.I("s_sub_u32", s(21), s(2), 27)
    div3(22, 23, 21)
    k.I("s_lshl_b32", s(26), s(22), 1)
    qkv_dst(26, 23)
    k.I("s_lshr_b32", s(24), s(22), 3); k.I("s_mul_i32", s(24), s(24), 1152)
    k.I("s_and_b32", s(25), s(22), 7); k.I("s_mul_i32", s(25), s(25), 144)
    k.I("s_add_u32", s(51), s(51), s(24)); k.I("s_add_u32", s(51), s(51), s(25))
    k.I("s_mov_b32", s(57), 1)
    k.I("s_branch", Lgo)
    k.label(Lwo)
    k.I("s_sub_u32", s(21), s(2), 75)
    div3(22, 23, 21)
    make_srd(k, SRD_A, 40, D * D * 2)
    k.I("s_mov_b32", s(50), 1152)
    k.I("s_mul_i32", s(51), s(23), 216 * 1152)
    k.I("s_lshl_b32", s(24), s(22), 7)
    k.I("s_add_u32", s(51), s(51), s(24))
    k.I("s_mul_i32", s(52), s(22), 2 * 36 * 1024)
    k.I("s_mul_i32", s(24), s(23), 12 * 2048)
    k.I("s_add_u32", s(52), s(52), s(24))
    k.I("s_add_u32", s(52), s(52), off["WO"])
    k.I("s_mov_b32", s(53), 1024)
    k.I("s_mov_b32", s(54), 2048)
    k.I("s_mov_b32", s(56), 1)
    k.I("s_cmp_eq_u32", s(23), 2)
    k.I("s_cselect_b32", s(58), 8, 12)
    k.label(Lgo)
    Lbar = k.newlabel("BAR")
    k.I("v_lshrrev_b32", v(vT), 3, v(vL))
    k.I("v_mul_lo_u32", v(vT), v(vT), s(50))
    k.I("v_and_b32", v(vOff), 7, v(vL))
    k.I("v_lshlrev_b32", v(vCol), 4, v(vOff))
    k.I("v_lshrrev_b32", v(vA), 2, v(vOff))
    k.I("v_mul_u32_u24", v(vA), 72, v(vA))
    k.I("v_and_b32", v(vPi), 1, v(vOff))
    k.I("v_lshl_add_u32", v(vA), v(vPi), 4, v(vA))
    k.I("v_bfe_u32", v(vPi), v(vOff), 1, 1)
    k.I("v_mul_u32_u24", v(vPi), 36, v(vPi))
    k.I("v_add_u32", v(vA), v(vA), v(vPi))
    k.I("s_cmp_eq_u32", s(57), 1)
    k.I("s_cselect_b64", s(30, 2), -1, 0)
    k.I("v_cndmask_b32", v(vCol), v(vCol), v(vA), s(30, 2))
    k.I("v_add_u32", v(vOff), v(vCol), v(vT))
    k.I("s_add_u32", s(59), s(56), 6)
    k.I("s_mul_i32", s(24), s(20), s(59))
    k.I("s_lshl_b32", s(25), s(24), 10)
    k.I("s_lshl_b32", s(24), s(24), 3)
    k.I("s_mul_i32", s(24), s(24), s(50))
    k.I("s_add_u32", s(24), s(24), s(51))
    k.I("s_lshl_b32", s(26), s(50), 3)
    def piece():
        k.I("s_mov_b32", "m0", s(25))
        k.I("buffer_load_dwordx4", v(vOff), s(SRD_A, 4), s(24), mods="offen lds")
        k.I("s_add_u32", s(24), s(24), s(26))
        k.I("s_add_u32", s(25), s(25), 1024)
    for i in range(6): piece()
    k.I("s_cmp_eq_u32", s(56), 0)
    k.if_scc("s_cbranch_scc1", piece)
    k.I("v_and_b32", v(vT), 3, v(vL))
    k.I("v_and_b32", v(vCol), 1, v(vT))
    k.I("v_lshlrev_b32", v(vCol), 1, v(vCol))
    k.I("v_lshrrev_b32", v(vA), 1, v(vT))
    k.I("v_or_b32", v(vCol), v(vCol), v(vA))
    k.I("s_cmp_eq_u32", s(55), 1)
    k.I("s_cselect_b64", s(30, 2), -1, 0)
    k.I("v_cndmask_b32", v(vCol), v(vT), v(vCol), s(30, 2))
    k.I("v_lshlrev_b32", v(vCol), 3, v(vCol))
    k.I("v_bfe_u32", v(vT), v(vL), 4, 1)
    k.I("v_lshl_add_u32", v(vCol), v(vT), 5, v(vCol))
    k.I("v_bfe_u32", v(vT), v(vL), 2, 2)
    k.I("s_sub_u32", s(27), 3, s(56))
    k.I("v_lshlrev_b32", v(vPi), s(27), v(vH))
    k.I("v_add_u32", v(vT), v(vT), v(vPi))
    k.I("v_lshl_add_u32", v(vA), v(vT), 7, v(vCol))
    k.I("s_waitcnt", "vmcnt(0)")
    rt(1)
    k.I("s_barrier")
    k.I("v_lshlrev_b32", v(vOff), 4, v(vL))
    k.I("s_lshr_b32", s(24), s(20), 1)
    k.I("s_and_b32", s(25), s(20), 1)
    k.I("s_mul_i32", s(25), s(25), 6)
    k.I("s_lshl_b32", s(26), s(24), 6)
    k.I("s_mul_i32", s(28), s(56), 256)
    k.I("s_add_u32", s(28), s(28), 2048)
    k.I("s_mul_i32", s(27), s(25), s(28))
    k.I("s_add_u32", s(26), s(26), s(27))
    k.I("v_add_u32", v(vA), s(26), v(vA))
    k.I("s_mul_i32", s(26), s(24), s(53))
    k.I("s_mul_i32", s(27), s(25), s(54))
    k.I("s_add_u32", s(26), s(26), s(27))
    k.I("s_add_u32", s(26), s(26), s(52))
    def rds(step_bytes, jj_bytes):
        for i in range(6):
            for jj in range(2):
                k.I("ds_read_b64_tr_b16", v(16 + 4 * i + 2 * jj, 2), v(vA), mods=f"offset:{i * step_bytes + jj * jj_bytes}")
    k.I("s_cmp_eq_u32", s(56), 1)
    k.if_else("s_cbranch_scc1", lambda: rds(2048, 512), lambda: rds(2304, 1024))
    for i in range(6):
        if i:
            k.I("s_add_u32", s(25), s(25), 1)
            k.I("s_cmp_ge_u32", s(25), s(58))
            k.I("s_cbranch_scc1", k.endlabel)
        k.I("buffer_store_dwordx4", v(16 + 4 * i, 4), v(vOff), s(SRD_WS, 4), s(26), mods="offen")
        k.I("s_add_u32", s(26), s(26), s(54))
    rt_out()
    k.I("s_endpgm")
    k.label(Lx)
    make_srd(k, SRD_A, 36, S * D * 2)
    k.I("s_sub_u32", s(3), s(2), NTR)
    k.I("s_cmp_eq_u32", s(20), 3)
    Lb3 = k.newlabel("B3")
    k.I("s_cbranch_scc1", Lb3)
    red_body(k, 0, wg=3, G=3)
    rt(1)
    rt_out()
    k.I("s_endpgm")
    k.label(Lb3)
    k.I("s_barrier")
    k.I("s_endpgm")
    k.label(Lg)
    k.I("s_cmp_ge_u32", s(20), 1)
    k.I("s_cbranch_scc1", k.endlabel)
    k.I("s_sub_u32", s(21), s(2), NTR + NX)
    Lwe = k.newlabel("WE"); Lst = k.newlabel("ST")
    DAT = 16; TMP = 32
    k.I("s_cmp_ge_u32", s(21), 48); k.I("s_cbranch_scc1", Lwe)
    k.I("s_mul_i32", s(22), s(21), 5462); k.I("s_lshr_b32", s(22), s(22), 16)
    k.I("s_mul_i32", s(23), s(22), 12); k.I("s_sub_u32", s(23), s(21), s(23))
    k.I("s_mul_i32", s(23), s(23), 3)
    make_srd(k, SRD_A, 38, D * 3 * D * 2)
    k.I("s_lshr_b32", s(28), s(22), 1); k.I("s_mul_i32", s(28), s(28), 576)
    k.I("s_and_b32", s(27), s(22), 1); k.I("s_mul_i32", s(27), s(27), 288)
    k.I("s_add_u32", s(27), s(27), s(28)); k.I("s_add_u32", s(27), s(27), 16)
    k.I("v_lshrrev_b32", v(vT), 1, v(vM))
    k.I("v_mul_u32_u24", v(vT), 18, v(vT))
    k.I("v_and_b32", v(vCol), 1, v(vM))
    k.I("v_add3_u32", v(vCol), v(vCol), v(vT), s(27))
    k.I("v_mul_u32_u24", v(vT), 8 * 3456, v(vH))
    k.I("v_lshl_add_u32", v(vOff), v(vCol), 1, v(vT))
    k.I("s_mul_i32", s(56), s(23), 16 * 3456)
    for i in range(3):
        for j in range(8):
            k.I("buffer_load_ushort", v(TMP + 8 * i + j), v(vOff), s(SRD_A, 4), s(56), mods="offen")
            k.I("s_add_u32", s(56), s(56), 3456 * (1 if j < 7 else 9))
    k.I("s_lshl_b32", s(51), s(22), 10)
    k.I("s_mul_i32", s(24), s(23), 4096)
    k.I("s_add_u32", s(51), s(51), s(24))
    k.I("s_add_u32", s(51), s(51), off["WQKV"] + 8 * 4 * 36 * 1024)
    k.I("s_mov_b32", s(52), 4096)
    k.I("s_branch", Lst)
    k.label(Lwe)
    k.I("s_sub_u32", s(21), s(21), 48)
    k.I("s_mul_i32", s(21), s(21), 3)
    make_srd(k, SRD_A, 40, D * D * 2)
    k.I("v_and_b32", v(vPi), 0x13, v(vM))
    k.I("v_and_b32", v(vT), 4, v(vM))
    k.I("v_lshl_or_b32", v(vPi), v(vT), 1, v(vPi))
    k.I("v_and_b32", v(vT), 8, v(vM))
    k.I("v_lshrrev_b32", v(vT), 1, v(vT))
    k.I("v_or_b32", v(vPi), v(vPi), v(vT))
    k.I("v_mul_u32_u24", v(vT), 72 * 1152, v(vH))
    k.I("v_lshl_add_u32", v(vOff), v(vPi), 1, v(vT))
    for i in range(3):
        k.I("s_add_u32", s(22), s(21), i)
        k.I("s_lshr_b32", s(23), s(22), 2)
        k.I("s_and_b32", s(24), s(22), 3)
        k.I("s_mul_i32", s(56), s(24), 144 * 1152)
        k.I("s_lshl_b32", s(25), s(23), 6)
        k.I("s_add_u32", s(56), s(56), s(25))
        for j in range(8):
            r = 18 * (j >> 1) + 16 + (j & 1)
            k.I("s_add_u32", s(57), s(56), r * 1152)
            k.I("buffer_load_ushort", v(TMP + 8 * i + j), v(vOff), s(SRD_A, 4), s(57), mods="offen")
        k.I("s_lshr_b32", s(25), s(23), 1); k.I("s_mul_i32", s(60 + i), s(25), 2 * 36 * 1024)
        k.I("s_add_u32", s(24), s(24), 32); k.I("s_lshl_b32", s(24), s(24), 11)
        k.I("s_add_u32", s(60 + i), s(60 + i), s(24))
        k.I("s_and_b32", s(25), s(23), 1); k.I("s_lshl_b32", s(25), s(25), 10)
        k.I("s_add_u32", s(60 + i), s(60 + i), s(25))
        k.I("s_add_u32", s(60 + i), s(60 + i), off["WO"])
    k.wait_all(lgkm=False)
    for i in range(12):
        k.I("v_lshl_or_b32", v(DAT + i), v(TMP + 2 * i + 1), 16, v(TMP + 2 * i))
    k.I("v_lshlrev_b32", v(vOff), 4, v(vL))
    for i in range(3):
        k.I("buffer_store_dwordx4", v(DAT + 4 * i, 4), v(vOff), s(SRD_WS, 4), s(60 + i), mods="offen")
    k.I("s_endpgm")
    k.label(Lst)
    k.wait_all(lgkm=False)
    for i in range(12):
        k.I("v_lshl_or_b32", v(DAT + i), v(TMP + 2 * i + 1), 16, v(TMP + 2 * i))
    k.I("v_lshlrev_b32", v(vOff), 4, v(vL))
    for i in range(3):
        k.I("buffer_store_dwordx4", v(DAT + 4 * i, 4), v(vOff), s(SRD_WS, 4), s(51), mods="offen")
        k.I("s_add_u32", s(51), s(51), s(52))
    k.I("s_endpgm")
    k.label(Lo)
    k.I("s_sub_u32", s(20), s(2), NTR + NX + NG)
    k.I("s_mul_i32", s(20), s(20), KV_HEAD)
    k.I("s_add_u32", s(20), s(20), off["KV"])
    k.I("v_cmp_gt_u32", "vcc", 256, v(0))
    k.I("s_and_saveexec_b64", s(30, 2), "vcc")
    k.I("s_cbranch_execz", k.endlabel)
    k.I("v_lshrrev_b32", v(1), 1, v(0))
    k.I("v_lshrrev_b32", v(2), 4, v(1))
    k.I("v_mul_u32_u24", v(2), KV_CHUNK, v(2))
    k.I("v_and_b32", v(1), 15, v(1))
    k.I("v_mul_u32_u24", v(1), 640, v(1))
    k.I("v_and_b32", v(3), 1, v(0))
    k.I("v_mul_u32_u24", v(3), 320, v(3))
    k.I("v_add3_u32", v(1), v(1), v(2), v(3))
    k.I("v_add_u32", v(1), 9216 + 18 * 16, v(1))
    for i in range(4):
        k.I("v_mov_b32", v(4 + i), "0x3f803f80")
        k.I("v_mov_b32", v(8 + i), 0)
    k.I("buffer_store_dwordx4", v(4, 4), v(1), s(SRD_WS, 4), s(20), mods="offen plain")
    k.I("buffer_store_dwordx4", v(8, 4), v(1), s(SRD_WS, 4), s(20), mods="offen offset:16 plain")
    return finish(k)
```

```python
import sys, os
from common import *
import k_prep, k_gemm1, k_ffn, k_attn

def build(out, nlaunch=None, extra_launches=0):
    kernels = []
    def add(res, nv=None, na=0):
        if isinstance(res, tuple): k, d = res; kernels.append((k, d["nv"], d["na"]))
        else: kernels.append((res, nv, na))
    add(k_prep.make_prep("prep_kernel"), 80)
    add(k_gemm1.make_qkv("qkv_kernel"))
    add(k_attn.make_attn("attn1_kernel"))
    add(k_gemm1.make_wo("wo_kernel"))
    add(k_ffn.make_ffn1("ffn1_kernel"))
    add(k_ffn.make_ffn2("ffn2_kernel"))
    add(k_prep.make_red("redmid_kernel", 1), 72)
    add(k_prep.make_red("redlast_kernel", 2), 72)
    L = []
    L.append(("prep_kernel", 102 + 256 + 72 + 32, 256, 28672))
    for layer in range(2):
        L.append(("qkv_kernel", 224, 512, 147456))
        L.append(("attn1_kernel" if layer == 0 else "attn2_kernel", 256, 576, 163840))
        L.append(("wo_kernel", 144, 512, 122880))
        L.append(("ffn1_kernel", 256, 512, 163840))
        L.append(("ffn2_kernel", 240, 512, 20480 * int(os.environ.get("FFN2_NB", "7"))))
        L.append(("redmid_kernel" if layer == 0 else "redlast_kernel", 256, 576, 1024))
    t = []
    hdr = open("interleave_layers__mha_block__dense_activation_silu__prompt.s.ref").read().split("\n")
    for line in hdr:
        if line.startswith("; Override") : break
        t.append(line)
    for (n, g, b, l) in L:
        t.append(f"; @launch kernel={n} grid=({g},1,1) block=({b},1,1) lds={l}")
    t.append('.amdgcn_target "amdgcn-amd-amdhsa--gfx950"')
    t.append(".text")
    for k, nv, na in kernels:
        txt = kernel_text(k, nv, na)
        if k.name == "attn1_kernel":
            txt = txt.replace("attn1_kernel:\n", "attn1_kernel:\n  s_mov_b32 s18, 1\nATTN_BODY:\n", 1)
            txt += ".globl attn2_kernel\n.p2align 8\n.type attn2_kernel,@function\nattn2_kernel:\n  s_mov_b32 s18, 0\n  s_branch ATTN_BODY\n"
        t.append(txt)
    t.append("TEXT_END:")
    t.append("  s_endpgm")
    t.append('.section .rodata,"a"')
    for k, nv, na in kernels:
        t.append(".p2align 6")
        t.append(descriptor(k.name, nv, na))
        if k.name == "attn1_kernel":
            t.append(".p2align 6"); t.append(descriptor("attn2_kernel", nv, na))
    open(out, "w").write("\n".join(t))
    return L

if __name__ == "__main__":
    out = sys.argv[1] if len(sys.argv) > 1 else "interleave_layers__mha_block__dense_activation_silu__prompt.s"
    build(out)
    print("written", out, "ws used", WS_USED)
```

```python
from common import *
import os

NLN2 = -0.6931471805599453
NPART = 5
def red_body(k, mode, wg=2, G=1):
    NP = 72 // G; NW = 9 // G
    vT, vN, vP, vOff, vRow = 0, 1, 2, 3, 4
    k.I("v_and_b32", v(vN), 7, v(vT))
    k.I("v_lshrrev_b32", v(vP), 3, v(vT))
    k.I("s_lshr_b32", s(20), s(wg), 2)
    k.I("s_and_b32", s(21), s(wg), 3)
    k.I("s_lshl_b32", s(21), s(21), 3)
    k.I("s_mul_i32", s(22), s(20), 36864)
    k.I("s_lshl_b32", s(23), s(21), 4)
    k.I("s_add_u32", s(22), s(22), s(23))
    k.I("v_lshlrev_b32", v(vOff), 9, v(vP))
    k.I("v_lshl_add_u32", v(vOff), v(vN), 4, v(vOff))
    if mode in (0, 2):
        k.I("s_lshl_b32", s(24), s(wg), 3)
        k.I("v_add_u32", v(vRow), s(24), v(vN))
        k.I("v_mul_u32_u24", v(vRow), 1152, v(vRow))
        k.I("v_lshl_add_u32", v(vRow), v(vP), 4, v(vRow))
    X = 8
    P = X + 4 * G
    A = P + (4 * G * NPART if mode else 0)
    T = A + 8 * G
    def xf_store(base):
        k.I("s_add_u32", s(25), s(22), base)
        for g in range(G):
            if g: k.I("s_add_u32", s(25), s(25), NP * 512)
            k.I("buffer_store_dwordx4", v(X + 4 * g, 4), v(vOff), s(SRD_WS, 4), s(25), mods="offen")
    def unpack(dst, src, n):
        for i in range(n):
            k.I("v_lshlrev_b32", v(dst + 2 * i), 16, v(src + i))
            k.I("v_and_b32", v(dst + 2 * i + 1), "0xffff0000", v(src + i))
    if mode == 0:
        for g in range(G):
            k.I("buffer_load_dwordx4", v(X + 4 * g, 4), v(vRow), s(SRD_A, 4), 0, mods=f"offen offset:{g * NP * 16}" if g else "offen")
        unpack(A, X, 4 * G)
    else:
        assert G == 1
        for q in range(NPART):
            k.I("s_add_u32", s(25), s(22), off["PART"] + q * XF_BYTES)
            k.I("buffer_load_dwordx4", v(P + q * 4, 4), v(vOff), s(SRD_WS, 4), s(25), mods="offen")
        k.I("s_add_u32", s(25), s(22), off["XF"])
        k.I("buffer_load_dwordx4", v(X, 4), v(vOff), s(SRD_WS, 4), s(25), mods="offen")
        for q in range(NPART):
            unpack(A if q == 0 else T, P + q * 4, 4)
            if q:
                for i in range(8): k.I("v_add_f32", v(A + i), v(A + i), v(T + i))
        k.I("s_mov_b32", s(26), hexf(NLN2))
        unpack(T, X, 4)
        for i in range(8): k.I("v_fma_f32", v(A + i), v(A + i), s(26), v(T + i))
        for i in range(4): k.I("v_cvt_pk_bf16_f32", v(X + i), v(A + 2 * i), v(A + 2 * i + 1))
        if mode == 2:
            k.I("buffer_store_dwordx4", v(X, 4), v(vRow), s(SRD_A, 4), 0, mods="offen plain")
            return
        unpack(A, X, 4)
    xf_store(off["XF"])
    vS, vQ = T + 8, T + 9
    k.I("v_add_f32", v(vS), v(A), v(A + 1))
    k.I("v_mul_f32", v(vQ), v(A), v(A))
    k.I("v_fmac_f32", v(vQ), v(A + 1), v(A + 1))
    for i in range(2, 8 * G):
        k.I("v_add_f32", v(vS), v(vS), v(A + i))
        k.I("v_fmac_f32", v(vQ), v(A + i), v(A + i))
    for r in (vS, vQ):
        k.I("v_add_f32_dpp", v(r), v(r), v(r), mods="row_ror:8 row_mask:0xf bank_mask:0xf")
    for r in (vS, vQ):
        k.I("v_mov_b32", v(T), v(r))
        k.I("v_permlane16_swap_b32", v(T), v(r))
        k.I("v_add_f32", v(r), v(r), v(T))
    for r in (vS, vQ):
        k.I("v_mov_b32", v(T), v(r))
        k.I("v_permlane32_swap_b32", v(T), v(r))
        k.I("v_add_f32", v(r), v(r), v(T))
    k.I("v_lshrrev_b32", v(T), 6, v(vT))
    k.I("v_lshlrev_b32", v(T), 3, v(T))
    k.I("v_mul_u32_u24", v(T + 1), 80, v(vN))
    k.I("v_add_u32", v(T), v(T), v(T + 1))
    k.I("ds_write_b64", v(T), v(vS, 2))
    k.I("s_barrier")
    for w in range(NW):
        k.I("ds_read_b64", v(T + 10 + 2 * w, 2), v(T + 1), mods=f"offset:{8 * w}")
    k.I("v_add_f32", v(vS), v(T + 10), v(T + 12))
    k.I("v_add_f32", v(vQ), v(T + 11), v(T + 13))
    for w in range(2, NW):
        k.I("v_add_f32", v(vS), v(vS), v(T + 10 + 2 * w))
        k.I("v_add_f32", v(vQ), v(vQ), v(T + 11 + 2 * w))
    k.I("v_mul_f32", v(vS), hexf(1.0 / D), v(vS))
    k.I("v_mul_f32", v(vQ), hexf(1.0 / D), v(vQ))
    k.I("v_fma_f32", v(vQ), "-" + v(vS), v(vS), v(vQ))
    k.I("v_max_f32", v(vQ), 0, v(vQ))
    k.I("v_add_f32", v(vQ), hexf(1e-5), v(vQ))
    k.I("v_rsq_f32", v(vQ), v(vQ))
    k.I("v_mul_f32", v(vS), v(vS), v(vQ))
    for i in range(8 * G):
        k.I("v_fma_f32", v(A + i), v(A + i), v(vQ), "-" + v(vS))
    for i in range(4 * G):
        k.I("v_cvt_pk_bf16_f32", v(X + i), v(A + 2 * i), v(A + 2 * i + 1))
    xf_store(off["XN"])

def make_red(name, mode):
    k = begin(name)
    exit_if_ge(k, 2, 256)
    load_ptr(k, 4, 8)
    load_ptr(k, 6, 6)
    k.wait_all(vm=False)
    make_srd(k, SRD_WS, 4, WS_SIZE)
    make_srd(k, SRD_A, 6, S * D * 2)
    red_body(k, mode)
    return finish(k)

def make_prep(name):
    NTR = 102; NX = 256; NG = 72
    k = begin(name)
    exit_if_ge(k, 2, NTR + NX + NG + 32)
    k.I("s_load_dwordx4", s(36, 4), s(0, 2), 0)
    k.I("s_load_dwordx2", s(40, 2), s(0, 2), 16)
    k.I("s_load_dwordx4", s(44, 4), s(0, 2), 32)
    load_ptr(k, 4, 8)
    vL, vM, vH, vCol, vOff, vT, vPi, vA = 1, 2, 3, 4, 5, 6, 7, 8
    k.I("v_and_b32", v(vL), 63, v(0))
    k.I("v_and_b32", v(vM), 31, v(0))
    k.I("v_bfe_u32", v(vH), v(0), 5, 1)
    k.I("v_lshrrev_b32", v(vT), 6, v(0))
    k.I("v_readfirstlane_b32", s(20), v(vT))
    k.wait_all(vm=False)
    make_srd(k, SRD_WS, 4, WS_SIZE)
    def rt(i):
        if STAMP:
            k.I("s_memrealtime", s(64 + 2 * i, 2)); k.I("s_waitcnt", "lgkmcnt(0)")
    def rt_out():
        if not STAMP: return
        k.I("s_waitcnt", "vmcnt(0)")
        rt(2)
        k.I("s_lshl_b32", s(61), s(2), 4)
        k.I("s_add_u32", s(61), s(61), WS_USED + 65536)
        k.I("v_mov_b32", v(60), 0)
        for i in range(3):
            k.I("v_mov_b32", v(61), s(64 + 2 * i))
            k.I("buffer_store_dword", v(61), v(60), s(SRD_WS, 4), s(61), mods=f"offen offset:{4 * i}")
    rt(0)
    Lx = k.newlabel("X"); Lg = k.newlabel("G"); Lo = k.newlabel("O")
    k.I("s_cmp_ge_u32", s(2), NTR + NX + NG); k.I("s_cbranch_scc1", Lo)
    k.I("s_cmp_ge_u32", s(2), NTR + NX); k.I("s_cbranch_scc1", Lg)
    k.I("s_cmp_ge_u32", s(2), NTR); k.I("s_cbranch_scc1", Lx)
    Lw2 = k.newlabel("TW2"); Lv = k.newlabel("TV"); Lqk = k.newlabel("TQK"); Lwo = k.newlabel("TWO"); Lgo = k.newlabel("TGO")
    def div3(dst_q, dst_r, src):
        k.I("s_mul_i32", s(dst_q), s(src), 21846)
        k.I("s_lshr_b32", s(dst_q), s(dst_q), 16)
        k.I("s_mul_i32", s(dst_r), s(dst_q), 3)
        k.I("s_sub_u32", s(dst_r), s(src), s(dst_r))
    k.I("s_mov_b32", s(56), 0); k.I("s_mov_b32", s(57), 0); k.I("s_mov_b32", s(58), 12); k.I("s_mov_b32", s(55), 1)
    k.I("s_cmp_ge_u32", s(2), 75); k.I("s_cbranch_scc1", Lwo)
    k.I("s_cmp_ge_u32", s(2), 27); k.I("s_cbranch_scc1", Lqk)
    k.I("s_branch", Lv)
    def qkv_dst(sG, sThird):
        k.I("s_lshr_b32", s(24), s(sG), 2)
        k.I("s_mul_i32", s(52), s(24), 4 * 36 * 1024)
        k.I("s_and_b32", s(25), s(sG), 3); k.I("s_lshl_b32", s(25), s(25), 10)
        k.I("s_add_u32", s(52), s(52), s(25))
        k.I("s_mul_i32", s(24), s(sThird), 12 * 4096)
        k.I("s_add_u32", s(52), s(52), s(24))
        k.I("s_add_u32", s(52), s(52), off["WQKV"])
        k.I("s_mov_b32", s(53), 1024)
        k.I("s_mov_b32", s(54), 4096)
        k.I("s_mov_b32", s(55), 0)
        make_srd(k, SRD_A, 38, D * 3 * D * 2)
        k.I("s_mov_b32", s(50), 3456)
        k.I("s_mul_i32", s(51), s(sThird), 192 * 3456)
    k.label(Lv)
    k.I("s_mov_b32", s(21), s(2))
    div3(22, 23, 21)
    k.I("s_lshl_b32", s(26), s(22), 1); k.I("s_add_u32", s(26), s(26), 36)
    qkv_dst(26, 23)
    k.I("s_lshl_b32", s(24), s(22), 7)
    k.I("s_add_u32", s(51), s(51), s(24))
    k.I("s_add_u32", s(51), s(51), 2304)
    k.I("s_branch", Lgo)
    k.label(Lqk)
    k.I("s_sub_u32", s(21), s(2), 27)
    div3(22, 23, 21)
    k.I("s_lshl_b32", s(26), s(22), 1)
    qkv_dst(26, 23)
    k.I("s_lshr_b32", s(24), s(22), 3); k.I("s_mul_i32", s(24), s(24), 1152)
    k.I("s_and_b32", s(25), s(22), 7); k.I("s_mul_i32", s(25), s(25), 144)
    k.I("s_add_u32", s(51), s(51), s(24)); k.I("s_add_u32", s(51), s(51), s(25))
    k.I("s_mov_b32", s(57), 1)
    k.I("s_branch", Lgo)
    k.label(Lwo)
    k.I("s_sub_u32", s(21), s(2), 75)
    div3(22, 23, 21)
    make_srd(k, SRD_A, 40, D * D * 2)
    k.I("s_mov_b32", s(50), 1152)
    k.I("s_mul_i32", s(51), s(23), 216 * 1152)
    k.I("s_lshl_b32", s(24), s(22), 7)
    k.I("s_add_u32", s(51), s(51), s(24))
    k.I("s_mul_i32", s(52), s(22), 2 * 36 * 1024)
    k.I("s_mul_i32", s(24), s(23), 12 * 2048)
    k.I("s_add_u32", s(52), s(52), s(24))
    k.I("s_add_u32", s(52), s(52), off["WO"])
    k.I("s_mov_b32", s(53), 1024)
    k.I("s_mov_b32", s(54), 2048)
    k.I("s_mov_b32", s(56), 1)
    k.I("s_cmp_eq_u32", s(23), 2)
    k.I("s_cselect_b32", s(58), 8, 12)
    k.label(Lgo)
    Lbar = k.newlabel("BAR")
    k.I("v_lshrrev_b32", v(vT), 3, v(vL))
    k.I("v_mul_lo_u32", v(vT), v(vT), s(50))
    k.I("v_and_b32", v(vOff), 7, v(vL))
    k.I("v_lshlrev_b32", v(vCol), 4, v(vOff))
    k.I("v_lshrrev_b32", v(vA), 2, v(vOff))
    k.I("v_mul_u32_u24", v(vA), 72, v(vA))
    k.I("v_and_b32", v(vPi), 1, v(vOff))
    k.I("v_lshl_add_u32", v(vA), v(vPi), 4, v(vA))
    k.I("v_bfe_u32", v(vPi), v(vOff), 1, 1)
    k.I("v_mul_u32_u24", v(vPi), 36, v(vPi))
    k.I("v_add_u32", v(vA), v(vA), v(vPi))
    k.I("s_cmp_eq_u32", s(57), 1)
    k.I("s_cselect_b64", s(30, 2), -1, 0)
    k.I("v_cndmask_b32", v(vCol), v(vCol), v(vA), s(30, 2))
    k.I("v_add_u32", v(vOff), v(vCol), v(vT))
    k.I("s_add_u32", s(59), s(56), 6)
    k.I("s_mul_i32", s(24), s(20), s(59))
    k.I("s_lshl_b32", s(25), s(24), 10)
    k.I("s_lshl_b32", s(24), s(24), 3)
    k.I("s_mul_i32", s(24), s(24), s(50))
    k.I("s_add_u32", s(24), s(24), s(51))
    k.I("s_lshl_b32", s(26), s(50), 3)
    def piece():
        k.I("s_mov_b32", "m0", s(25))
        k.I("buffer_load_dwordx4", v(vOff), s(SRD_A, 4), s(24), mods="offen lds")
        k.I("s_add_u32", s(24), s(24), s(26))
        k.I("s_add_u32", s(25), s(25), 1024)
    for i in range(6): piece()
    k.I("s_cmp_eq_u32", s(56), 0)
    k.if_scc("s_cbranch_scc1", piece)
    k.I("v_and_b32", v(vT), 3, v(vL))
    k.I("v_and_b32", v(vCol), 1, v(vT))
    k.I("v_lshlrev_b32", v(vCol), 1, v(vCol))
    k.I("v_lshrrev_b32", v(vA), 1, v(vT))
    k.I("v_or_b32", v(vCol), v(vCol), v(vA))
    k.I("s_cmp_eq_u32", s(55), 1)
    k.I("s_cselect_b64", s(30, 2), -1, 0)
    k.I("v_cndmask_b32", v(vCol), v(vT), v(vCol), s(30, 2))
    k.I("v_lshlrev_b32", v(vCol), 3, v(vCol))
    k.I("v_bfe_u32", v(vT), v(vL), 4, 1)
    k.I("v_lshl_add_u32", v(vCol), v(vT), 5, v(vCol))
    k.I("v_bfe_u32", v(vT), v(vL), 2, 2)
    k.I("s_sub_u32", s(27), 3, s(56))
    k.I("v_lshlrev_b32", v(vPi), s(27), v(vH))
    k.I("v_add_u32", v(vT), v(vT), v(vPi))
    k.I("v_lshl_add_u32", v(vA), v(vT), 7, v(vCol))
    k.I("s_waitcnt", "vmcnt(0)")
    rt(1)
    k.I("s_barrier")
    k.I("v_lshlrev_b32", v(vOff), 4, v(vL))
    k.I("s_lshr_b32", s(24), s(20), 1)
    k.I("s_and_b32", s(25), s(20), 1)
    k.I("s_mul_i32", s(25), s(25), 6)
    k.I("s_lshl_b32", s(26), s(24), 6)
    k.I("s_mul_i32", s(28), s(56), 256)
    k.I("s_add_u32", s(28), s(28), 2048)
    k.I("s_mul_i32", s(27), s(25), s(28))
    k.I("s_add_u32", s(26), s(26), s(27))
    k.I("v_add_u32", v(vA), s(26), v(vA))
    k.I("s_mul_i32", s(26), s(24), s(53))
    k.I("s_mul_i32", s(27), s(25), s(54))
    k.I("s_add_u32", s(26), s(26), s(27))
    k.I("s_add_u32", s(26), s(26), s(52))
    def rds(step_bytes, jj_bytes):
        for i in range(6):
            for jj in range(2):
                k.I("ds_read_b64_tr_b16", v(16 + 4 * i + 2 * jj, 2), v(vA), mods=f"offset:{i * step_bytes + jj * jj_bytes}")
    k.I("s_cmp_eq_u32", s(56), 1)
    k.if_else("s_cbranch_scc1", lambda: rds(2048, 512), lambda: rds(2304, 1024))
    for i in range(6):
        if i:
            k.I("s_add_u32", s(25), s(25), 1)
            k.I("s_cmp_ge_u32", s(25), s(58))
            k.I("s_cbranch_scc1", k.endlabel)
        k.I("buffer_store_dwordx4", v(16 + 4 * i, 4), v(vOff), s(SRD_WS, 4), s(26), mods="offen")
        k.I("s_add_u32", s(26), s(26), s(54))
    rt_out()
    k.I("s_endpgm")
    k.label(Lx)
    make_srd(k, SRD_A, 36, S * D * 2)
    k.I("s_sub_u32", s(3), s(2), NTR)
    k.I("s_cmp_eq_u32", s(20), 3)
    Lb3 = k.newlabel("B3")
    k.I("s_cbranch_scc1", Lb3)
    red_body(k, 0, wg=3, G=3)
    rt(1)
    rt_out()
    k.I("s_endpgm")
    k.label(Lb3)
    k.I("s_barrier")
    k.I("s_endpgm")
    k.label(Lg)
    k.I("s_cmp_ge_u32", s(20), 1)
    k.I("s_cbranch_scc1", k.endlabel)
    k.I("s_sub_u32", s(21), s(2), NTR + NX)
    Lwe = k.newlabel("WE"); Lst = k.newlabel("ST")
    DAT = 16; TMP = 32
    k.I("s_cmp_ge_u32", s(21), 48); k.I("s_cbranch_scc1", Lwe)
    k.I("s_mul_i32", s(22), s(21), 5462); k.I("s_lshr_b32", s(22), s(22), 16)
    k.I("s_mul_i32", s(23), s(22), 12); k.I("s_sub_u32", s(23), s(21), s(23))
    k.I("s_mul_i32", s(23), s(23), 3)
    make_srd(k, SRD_A, 38, D * 3 * D * 2)
    k.I("s_lshr_b32", s(28), s(22), 1); k.I("s_mul_i32", s(28), s(28), 576)
    k.I("s_and_b32", s(27), s(22), 1); k.I("s_mul_i32", s(27), s(27), 288)
    k.I("s_add_u32", s(27), s(27), s(28)); k.I("s_add_u32", s(27), s(27), 16)
    k.I("v_lshrrev_b32", v(vT), 1, v(vM))
    k.I("v_mul_u32_u24", v(vT), 18, v(vT))
    k.I("v_and_b32", v(vCol), 1, v(vM))
    k.I("v_add3_u32", v(vCol), v(vCol), v(vT), s(27))
    k.I("v_mul_u32_u24", v(vT), 8 * 3456, v(vH))
    k.I("v_lshl_add_u32", v(vOff), v(vCol), 1, v(vT))
    k.I("s_mul_i32", s(56), s(23), 16 * 3456)
    for i in range(3):
        for j in range(8):
            k.I("buffer_load_ushort", v(TMP + 8 * i + j), v(vOff), s(SRD_A, 4), s(56), mods="offen")
            k.I("s_add_u32", s(56), s(56), 3456 * (1 if j < 7 else 9))
    k.I("s_lshl_b32", s(51), s(22), 10)
    k.I("s_mul_i32", s(24), s(23), 4096)
    k.I("s_add_u32", s(51), s(51), s(24))
    k.I("s_add_u32", s(51), s(51), off["WQKV"] + 8 * 4 * 36 * 1024)
    k.I("s_mov_b32", s(52), 4096)
    k.I("s_branch", Lst)
    k.label(Lwe)
    k.I("s_sub_u32", s(21), s(21), 48)
    k.I("s_mul_i32", s(21), s(21), 3)
    make_srd(k, SRD_A, 40, D * D * 2)
    k.I("v_and_b32", v(vPi), 0x13, v(vM))
    k.I("v_and_b32", v(vT), 4, v(vM))
    k.I("v_lshl_or_b32", v(vPi), v(vT), 1, v(vPi))
    k.I("v_and_b32", v(vT), 8, v(vM))
    k.I("v_lshrrev_b32", v(vT), 1, v(vT))
    k.I("v_or_b32", v(vPi), v(vPi), v(vT))
    k.I("v_mul_u32_u24", v(vT), 72 * 1152, v(vH))
    k.I("v_lshl_add_u32", v(vOff), v(vPi), 1, v(vT))
    for i in range(3):
        k.I("s_add_u32", s(22), s(21), i)
        k.I("s_lshr_b32", s(23), s(22), 2)
        k.I("s_and_b32", s(24), s(22), 3)
        k.I("s_mul_i32", s(56), s(24), 144 * 1152)
        k.I("s_lshl_b32", s(25), s(23), 6)
        k.I("s_add_u32", s(56), s(56), s(25))
        for j in range(8):
            r = 18 * (j >> 1) + 16 + (j & 1)
            k.I("s_add_u32", s(57), s(56), r * 1152)
            k.I("buffer_load_ushort", v(TMP + 8 * i + j), v(vOff), s(SRD_A, 4), s(57), mods="offen")
        k.I("s_lshr_b32", s(25), s(23), 1); k.I("s_mul_i32", s(60 + i), s(25), 2 * 36 * 1024)
        k.I("s_add_u32", s(24), s(24), 32); k.I("s_lshl_b32", s(24), s(24), 11)
        k.I("s_add_u32", s(60 + i), s(60 + i), s(24))
        k.I("s_and_b32", s(25), s(23), 1); k.I("s_lshl_b32", s(25), s(25), 10)
        k.I("s_add_u32", s(60 + i), s(60 + i), s(25))
        k.I("s_add_u32", s(60 + i), s(60 + i), off["WO"])
    k.wait_all(lgkm=False)
    for i in range(12):
        k.I("v_lshl_or_b32", v(DAT + i), v(TMP + 2 * i + 1), 16, v(TMP + 2 * i))
    k.I("v_lshlrev_b32", v(vOff), 4, v(vL))
    for i in range(3):
        k.I("buffer_store_dwordx4", v(DAT + 4 * i, 4), v(vOff), s(SRD_WS, 4), s(60 + i), mods="offen")
    k.I("s_endpgm")
    k.label(Lst)
    k.wait_all(lgkm=False)
    for i in range(12):
        k.I("v_lshl_or_b32", v(DAT + i), v(TMP + 2 * i + 1), 16, v(TMP + 2 * i))
    k.I("v_lshlrev_b32", v(vOff), 4, v(vL))
    for i in range(3):
        k.I("buffer_store_dwordx4", v(DAT + 4 * i, 4), v(vOff), s(SRD_WS, 4), s(51), mods="offen")
        k.I("s_add_u32", s(51), s(51), s(52))
    k.I("s_endpgm")
    k.label(Lo)
    k.I("s_sub_u32", s(20), s(2), NTR + NX + NG)
    k.I("s_mul_i32", s(20), s(20), KV_HEAD)
    k.I("s_add_u32", s(20), s(20), off["KV"])
    k.I("v_cmp_gt_u32", "vcc", 256, v(0))
    k.I("s_and_saveexec_b64", s(30, 2), "vcc")
    k.I("s_cbranch_execz", k.endlabel)
    k.I("v_lshrrev_b32", v(1), 1, v(0))
    k.I("v_lshrrev_b32", v(2), 4, v(1))
    k.I("v_mul_u32_u24", v(2), KV_CHUNK, v(2))
    k.I("v_and_b32", v(1), 15, v(1))
    k.I("v_mul_u32_u24", v(1), 640, v(1))
    k.I("v_and_b32", v(3), 1, v(0))
    k.I("v_mul_u32_u24", v(3), 320, v(3))
    k.I("v_add3_u32", v(1), v(1), v(2), v(3))
    k.I("v_add_u32", v(1), 9216 + 18 * 16, v(1))
    for i in range(4):
        k.I("v_mov_b32", v(4 + i), "0x3f803f80")
        k.I("v_mov_b32", v(8 + i), 0)
    k.I("buffer_store_dwordx4", v(4, 4), v(1), s(SRD_WS, 4), s(20), mods="offen plain")
    k.I("buffer_store_dwordx4", v(8, 4), v(1), s(SRD_WS, 4), s(20), mods="offen offset:16 plain")
    if int(os.environ.get("CODEPF", "1")):
        k.raw("  s_getpc_b64 s[40:41]")
        k.raw("PF_HERE:")
        k.raw("  s_sub_u32 s40, s40, PF_HERE-prep_kernel")
        k.raw("  s_subb_u32 s41, s41, 0")
        k.raw("  s_mov_b32 s44, s40")
        k.raw("  s_and_b32 s45, s41, 0xffff")
        k.raw("  s_mov_b32 s46, TEXT_END-prep_kernel")
        k.raw("  s_mov_b32 s47, 0x20000")
        k.I("s_sub_u32", s(22), s(2), NTR + NX + NG)
        k.I("s_lshl_b32", s(22), s(22), 12)
        k.I("v_lshlrev_b32", v(12), 4, v(0))
        k.I("buffer_load_dwordx4", v(16, 4), v(12), s(44, 4), s(22), mods="offen")
        k.I("s_waitcnt", "vmcnt(0)")
    return finish(k)
```
